```python
import torch

def _softmax(x, axis=-1):
    return torch.softmax(x, dim=axis)
def _gelu(x):
    return torch.nn.functional.gelu(x, approximate="tanh")
def _silu(x):
    return torch.nn.functional.silu(x)
def _sigmoid(x):
    return torch.sigmoid(x)
def _layernorm(x, axis=-1, eps=1e-5):
    m = x.mean(dim=axis, keepdim=True)
    v = x.var(dim=axis, keepdim=True, unbiased=False)
    return (x - m) / torch.sqrt(v + eps)
def _scatter_add(tgt, idx, src, axis=0):
    return tgt.clone().index_add_(axis, idx, src)
def _segment_sum(src, seg, n):
    out = torch.zeros((n,) + src.shape[1:], dtype=src.dtype)
    return out.index_add_(0, seg, src)
def _pad(x, pw):
    flat = tuple(v for pair in reversed(pw) for v in pair)
    return torch.nn.functional.pad(x, flat)

kernel_name = 'concat_heads__gqa_block_cached__mha_block_cached__near_ridge'

def setup_inputs():

    _w = (lambda a: (lambda t: t.to(torch.bfloat16) if t.is_floating_point() else t)(torch.as_tensor(a)))
    def _A_setup():
        B, Sq, D = 8, 80, 512
        Hq, Hkv, Sk, Dh = 32, 8, 1024, 128
        assert Hq % Hkv == 0, (Hq, Hkv)
        return {
            "x": _w((lambda *s: torch.randn(*s, dtype=torch.bfloat16) * 0.8)(B, Sq, D)),
            "k_cache": _w((lambda *s: torch.randn(*s, dtype=torch.bfloat16) * 0.8)(B, Hkv, Sk, Dh)),
            "v_cache": _w((lambda *s: torch.randn(*s, dtype=torch.bfloat16) * 0.05)(B, Hkv, Sk, Dh)),
            "wq": _w((lambda *s: torch.randn(*s, dtype=torch.bfloat16) * 0.8)(D, Hq * Dh) * (D ** -0.5)),
            "wo": _w((lambda *s: torch.randn(*s, dtype=torch.bfloat16) * 0.05)(Hq * Dh, D) * ((Hq * Dh) ** -0.5)),
        }
    _A_in = _A_setup()

    def _B_setup():
        B, Sq, D = 8, 80, 512
        H, Sk, Dh = 32, 1024, 128
        return {
            "x": _w((lambda *s: torch.randn(*s, dtype=torch.bfloat16) * 0.8)(B, Sq, D)),
            "k_cache": _w((lambda *s: torch.randn(*s, dtype=torch.bfloat16) * 0.8)(B, H, Sk, Dh)),
            "v_cache": _w((lambda *s: torch.randn(*s, dtype=torch.bfloat16) * 0.05)(B, H, Sk, Dh)),
            "wq": _w((lambda *s: torch.randn(*s, dtype=torch.bfloat16) * 0.8)(D, H * Dh) * (D ** -0.5)),
            "wo": _w((lambda *s: torch.randn(*s, dtype=torch.bfloat16) * 0.05)(H * Dh, D) * ((H * Dh) ** -0.5)),
        }
    _B_in = _B_setup()

    return {
        "A_x": _A_in["x"],
        "A_k_cache": _A_in["k_cache"],
        "A_v_cache": _A_in["v_cache"],
        "A_wq": _A_in["wq"],
        "A_wo": _A_in["wo"],
        "B_x": _B_in["x"],
        "B_k_cache": _B_in["k_cache"],
        "B_v_cache": _B_in["v_cache"],
        "B_wq": _B_in["wq"],
        "B_wo": _B_in["wo"],
    }

def reference(A_x, A_k_cache, A_v_cache, A_wq, A_wo, B_x, B_k_cache, B_v_cache, B_wq, B_wo):
    def _A_ref(x, k_cache, v_cache, wq, wo):
        B, Sq, D = x.shape
        Hq, Dh = 32, 128
        Hkv = k_cache.shape[1]
        rep = Hq // Hkv
        q = (lambda x, *d: x.permute(*d))((x @ wq).reshape(B, Sq, Hq, Dh), 0, 2, 1, 3)
        k = (lambda x, n, axis: torch.repeat_interleave(x, n, dim=axis))(k_cache, rep, axis=1)
        v = (lambda x, n, axis: torch.repeat_interleave(x, n, dim=axis))(v_cache, rep, axis=1)
        scores = torch.einsum("bhqd,bhkd->bhqk", q, k) * (Dh ** -0.5)
        p = _softmax(scores, axis=-1)
        o = torch.einsum("bhqk,bhkd->bhqd", p, v)
        return (lambda x, *d: x.permute(*d))(o, 0, 2, 1, 3).reshape(B, Sq, Hq * Dh) @ wo

    def _B_ref(x, k_cache, v_cache, wq, wo):
        B, Sq, D = x.shape
        H, Dh = 32, 128
        q = (lambda x, *d: x.permute(*d))((x @ wq).reshape(B, Sq, H, Dh), 0, 2, 1, 3)
        scores = torch.einsum("bhqd,bhkd->bhqk", q, k_cache) * (Dh ** -0.5)
        p = _softmax(scores, axis=-1)
        o = torch.einsum("bhqk,bhkd->bhqd", p, v_cache)
        return (lambda x, *d: x.permute(*d))(o, 0, 2, 1, 3).reshape(B, Sq, H * Dh) @ wo

    a = _A_ref(A_x, A_k_cache, A_v_cache, A_wq, A_wo)
    b = _B_ref(B_x, B_k_cache, B_v_cache, B_wq, B_wo)
    return torch.concatenate([a, b], axis=-1)
```

```python
import sys, math, argparse

NAME = "concat_heads__gqa_block_cached__mha_block_cached__near_ridge"

class Asm:
    def __init__(self):
        self.lines = []
        self.vm_done = 0
        self.vm_seq = 0
    def __call__(self, s):
        self.lines.append("    " + s)
    def label(self, l):
        self.lines.append(l + ":")
    def c(self, s):
        self.lines.append("    ; " + s)
    def vmem(self, s):
        self(s); self.vm_seq += 1
        return self.vm_seq
    def wait_vm(self, op_id):
        if op_id <= self.vm_done:
            return
        n = self.vm_seq - op_id
        assert 0 <= n <= 63, n
        self("s_waitcnt vmcnt(%d)" % n)
        self.vm_done = op_id
    def text(self):
        return "\n".join(self.lines) + "\n"

def vr(b, n=1):
    return "v%d" % b if n == 1 else "v[%d:%d]" % (b, b + n - 1)
def ar(b, n=1):
    return "a%d" % b if n == 1 else "a[%d:%d]" % (b, b + n - 1)
def sr(b, n=1):
    return "s%d" % b if n == 1 else "s[%d:%d]" % (b, b + n - 1)

def f32bits(x):
    import struct
    return struct.unpack("<I", struct.pack("<f", x))[0]

MFMA = "v_mfma_f32_16x16x32_bf16"

S_K, S_V, S_X, S_WQ, S_O = 4, 8, 12, 16, 20
S_W = 24
S_RING = 25
S_ST0, S_ST1 = 26, 27
S_CNT = 28
S_T0, S_T1, S_T2, S_T3 = 29, 30, 31, 32
S_QT = 64
S_WQOFF = 33
S_SCALE = 34
S_MODE = 35
S_KA = 36
V_LANE = 0
V_T = 1
V_KOFF = 40
V_VOFF = 44
V_KRD = 46
V_VRD = 50
V_X = 58
V_WQ = 59
V_ONES = 60
V_KF = 64
V_VF = 128
V_S = 192
V_P = 208
V_NEGM = 216
V_L = 236
A_O = 0
A_Q = 160
def aO(el, q): return A_O + (el * 5 + q) * 4
def aQ(q, jl): return A_Q + (q * 4 + jl) * 4
def vKF(buf, kt, j): return V_KF + buf * 32 + (kt * 4 + j) * 4
def vVF(buf, e): return V_VF + buf * 32 + e * 4

LDS_SCR = 65536

def interleave(a, mfmas, fillers):
    total = sum(c for c, _ in fillers)
    n = len(mfmas)
    fi = 0
    acc = 0.0
    for k, m in enumerate(mfmas):
        a(m)
        target = total * (k + 1) / n
        while fi < len(fillers) and (acc + fillers[fi][0] / 2.0 <= target or k == n - 1):
            for ins in fillers[fi][1]:
                a(ins)
            acc += fillers[fi][0]
            fi += 1

def stamp(a, opt, i):
    if opt.stamp:
        a("s_memrealtime s[%d:%d]" % (84 + 2 * i, 85 + 2 * i))

def stamp_store(a, opt, n):
    if not opt.stamp:
        return
    a("s_waitcnt lgkmcnt(0)")
    a("s_lshl_b32 s29, s2, 1")
    a("s_add_u32 s29, s29, s%d" % S_W)
    a("s_lshl_b32 s29, s29, 6")
    a("s_add_u32 s29, s29, 0x8000000")
    a("s_add_u32 s%d, s60, s29" % S_X)
    a("s_addc_u32 s%d, s61, 0" % (S_X + 1))
    a("s_and_b32 s%d, s%d, 0xffff" % (S_X + 1, S_X + 1))
    a("s_mov_b32 s%d, 64" % (S_X + 2))
    a("v_mov_b32 v1, 0")
    for i in range(n):
        a("v_mov_b32 v2, s%d" % (84 + 2 * i))
        a("buffer_store_dword v2, v1, s[%d:%d], 0 offen offset:%d" % (S_X, S_X + 3, 4 * i))
    a("s_getreg_b32 s29, hwreg(HW_REG_XCC_ID)")
    a("v_mov_b32 v2, s29")
    a("buffer_store_dword v2, v1, s[%d:%d], 0 offen offset:%d" % (S_X, S_X + 3, 4 * n))
    a("s_getreg_b32 s29, hwreg(HW_REG_HW_ID)")
    a("v_mov_b32 v2, s29")
    a("buffer_store_dword v2, v1, s[%d:%d], 0 offen offset:%d" % (S_X, S_X + 3, 4 * n + 4))

def gen_attn(a, opt):
    nt = " nt" if opt.nt else ""
    a.label("attn_kernel")
    a("s_cmp_ge_u32 s2, 512")
    a("s_cbranch_scc1 L_attn_exit")
    stamp(a, opt, 0)
    a("s_load_dwordx16 s[36:51], s[0:1], 0")
    a("s_load_dwordx8 s[52:59], s[0:1], 64")
    a("s_load_dwordx2 s[60:61], s[0:1], 96")
    a("v_lshrrev_b32 v1, 6, v0")
    a("v_and_b32 v0, 63, v0")
    a("v_readfirstlane_b32 s%d, v1" % S_W)
    a("s_and_b32 s29, s2, 255")
    a("s_and_b32 s30, s29, 7")
    a("s_lshr_b32 s31, s29, 3")
    a("s_and_b32 s32, s31, 3")
    a("s_lshl_b32 s30, s30, 2")
    a("s_add_u32 s32, s32, s30")
    a("s_lshr_b32 s31, s31, 2")
    a("s_lshl_b32 s%d, s%d, 15" % (S_RING, S_W))
    for q in range(5):
        a("s_mov_b32 s%d, %d" % (S_QT + q, q * 16384))
    a("s_mov_b32 s%d, 0x%x" % (S_SCALE, f32bits(128 ** -0.5 * math.log2(math.e))))
    a("s_lshl_b32 s70, s31, 5")
    a("s_add_u32 s70, s70, s32")
    a("s_lshr_b32 s71, s70, 2")
    a("s_waitcnt lgkmcnt(0)")
    a("s_cmp_lt_u32 s2, 256")
    a("s_cselect_b64 s[72:73], s[46:47], s[36:37]")
    a("s_cselect_b64 s[74:75], s[48:49], s[38:39]")
    a("s_cselect_b64 s[76:77], s[50:51], s[40:41]")
    a("s_cselect_b64 s[78:79], s[52:53], s[42:43]")
    a("s_cselect_b32 s71, s70, s71")
    a("s_cselect_b32 s80, 256, 0")
    a("s_lshl_b32 s71, s71, 18")
    a("s_lshl_b32 s29, s%d, 17" % S_W)
    a("s_add_u32 s71, s71, s29")
    for (srd, p) in ((S_K, 74), (S_V, 76)):
        a("s_add_u32 s%d, s%d, s71" % (srd, p))
        a("s_addc_u32 s%d, s%d, 0" % (srd + 1, p + 1))
        a("s_and_b32 s%d, s%d, 0xffff" % (srd + 1, srd + 1))
        a("s_mov_b32 s%d, 131072" % (srd + 2))
        a("s_mov_b32 s%d, 0x20000" % (srd + 3))
    a("s_mul_i32 s29, s31, 81920")
    a("s_add_u32 s%d, s72, s29" % S_X)
    a("s_addc_u32 s%d, s73, 0" % (S_X + 1))
    a("s_and_b32 s%d, s%d, 0xffff" % (S_X + 1, S_X + 1))
    a("s_mov_b32 s%d, 81920" % (S_X + 2))
    a("s_mov_b32 s%d, 0x20000" % (S_X + 3))
    a("s_lshl_b32 s29, s32, 8")
    a("s_lshl_b32 s30, s%d, 7" % S_W)
    a("s_add_u32 s29, s29, s30")
    a("s_add_u32 s%d, s78, s29" % S_WQ)
    a("s_addc_u32 s%d, s79, 0" % (S_WQ + 1))
    a("s_and_b32 s%d, s%d, 0xffff" % (S_WQ + 1, S_WQ + 1))
    a("s_sub_u32 s%d, 0x400000, s29" % (S_WQ + 2))
    a("s_mov_b32 s%d, 0x20000" % (S_WQ + 3))
    a("s_add_u32 s29, s80, s70")
    a("s_mul_i32 s29, s29, 20480")
    a("s_mul_i32 s30, s%d, 10240" % S_W)
    a("s_add_u32 s29, s29, s30")
    a("s_add_u32 s%d, s60, s29" % S_O)
    a("s_addc_u32 s%d, s61, 0" % (S_O + 1))
    a("s_and_b32 s%d, s%d, 0xffff" % (S_O + 1, S_O + 1))
    a("s_mov_b32 s%d, 10240" % (S_O + 2))
    a("s_mov_b32 s%d, 0x20000" % (S_O + 3))
    a("v_lshrrev_b32 v1, 4, v0")
    a("v_and_b32 v2, 15, v0")
    a("v_lshlrev_b32 v3, 10, v2")
    a("v_lshl_add_u32 v%d, v1, 4, v3" % V_X)
    a("v_lshrrev_b32 v3, 3, v0")
    a("v_and_b32 v4, 7, v0")
    a("v_lshlrev_b32 v5, 13, v3")
    a("v_lshl_add_u32 v%d, v4, 4, v5" % V_WQ)
    a("v_xor_b32 v5, v2, v1")
    a("v_lshlrev_b32 v6, 8, v1")
    for q4 in range(4):
        a("v_xor_b32 v7, %d, v5" % (4 * q4))
        a("v_lshl_add_u32 v%d, v7, 4, v6" % (V_KOFF + q4))
    a("v_lshlrev_b32 v7, 1, v1")
    a("v_xor_b32 v5, v2, v7")
    for qq in range(2):
        a("v_xor_b32 v7, %d, v5" % (8 * qq))
        a("v_lshl_add_u32 v%d, v7, 4, v6" % (V_VOFF + qq))
    a("v_xor_b32 v5, v1, v2")
    a("v_lshlrev_b32 v5, 4, v5")
    a("v_lshl_add_u32 v5, v2, 8, v5")
    a("s_lshl_b32 s29, s%d, 7" % S_W)
    a("v_xor_b32 v5, s29, v5")
    a("v_add_u32 v5, s%d, v5" % S_RING)
    for jl in range(4):
        a("v_xor_b32 v%d, %d, v5" % (V_KRD + jl, 64 * jl))
    a("v_lshrrev_b32 v5, 2, v2")
    a("v_lshl_add_u32 v5, v1, 2, v5")
    a("v_and_b32 v6, 7, v5")
    a("v_lshlrev_b32 v6, 1, v6")
    a("v_bfe_u32 v7, v2, 1, 1")
    a("v_xor_b32 v6, v6, v7")
    a("v_lshlrev_b32 v6, 4, v6")
    a("v_lshl_add_u32 v6, v5, 8, v6")
    a("v_and_b32 v7, 1, v2")
    a("v_lshl_add_u32 v6, v7, 3, v6")
    a("v_xor_b32 v6, s29, v6")
    a("v_add_u32 v6, s%d, v6" % S_RING)
    for el in range(8):
        a("v_xor_b32 v%d, %d, v6" % (V_VRD + el, 32 * el))
    for i in range(4):
        a("v_mov_b32 v%d, 0x3f803f80" % (V_ONES + i))
    V_SW, V_SR0, V_SR1, V_LIN = 30, 31, 32, 33
    a("s_lshl_b32 s29, s%d, 13" % S_W)
    a("s_add_u32 s29, s29, %d" % LDS_SCR)
    a("v_bfe_u32 v5, v3, 1, 1")
    a("v_lshlrev_b32 v5, 2, v5")
    a("v_xor_b32 v5, v5, v4")
    a("v_lshlrev_b32 v5, 4, v5")
    a("v_lshl_add_u32 v5, v3, 7, v5")
    a("v_add_u32 v%d, s29, v5" % V_SW)
    a("v_lshrrev_b32 v5, 2, v2")
    a("v_lshl_add_u32 v6, v1, 3, v5")
    a("v_lshrrev_b32 v5, 1, v5")
    a("v_and_b32 v7, 3, v2")
    a("v_lshl_add_u32 v5, v5, 2, v7")
    a("v_lshlrev_b32 v5, 4, v5")
    a("v_lshl_add_u32 v5, v6, 7, v5")
    a("v_add_u32 v%d, s29, v5" % V_SR0)
    a("v_xor_b32 v%d, 64, v%d" % (V_SR1, V_SR0))
    a("v_lshlrev_b32 v%d, 4, v0" % V_LIN)
    a("s_mov_b32 s%d, 0" % S_WQOFF)

    def dma_group(kind, slot, soff):
        ins = ["s_add_u32 m0, s%d, %d" % (S_RING, slot * 4096)]
        srd = S_K if kind == 'K' else S_V
        for q4 in range(4):
            v = V_KOFF + q4 if kind == 'K' else V_VOFF + (q4 & 1)
            ins.append("buffer_load_dwordx4 v%d, s[%d:%d], s%d offen offset:%d%s lds" % (v, srd, srd + 3, soff, q4 * 1024, nt))
        return ins

    D = opt.qdepth
    V_WS = 64
    V_AF = V_WS + 16 * D
    V_ACC = 176
    assert V_AF + 32 <= V_ACC
    NXB = D + 2
    def aX(s, q): return (s % NXB) * 20 + q * 4
    def vACC(jp, u, q): return V_ACC + ((jp * 2 + u) * 5 + q) * 4
    last_load = {}
    def init_group(g):
        t, part = g // 4, g % 4
        kind = 'K' if part < 2 else 'V'
        a("s_mov_b32 s%d, %d" % (S_T1, t * 8192 + (part & 1) * 4096))
        ins = dma_group(kind, g, S_T1)
        a(ins[0]); a("s_nop 0")
        for i in ins[1:]:
            a.vmem(i)
        return a.vm_seq
    grp_id = {}
    def issue_loads(s):
        for i in range(4 if not opt.nowq else 0):
            a.vmem("buffer_load_dwordx4 %s, v%d, s[%d:%d], s%d offen" % (vr(V_WS + (s % D) * 16 + i * 4, 4), V_WQ, S_WQ, S_WQ + 3, S_WQOFF))
            a("s_add_u32 s%d, s%d, 65536" % (S_WQOFF, S_WQOFF))
        for q in range(5 if not opt.nox else 0):
            a.vmem("buffer_load_dwordx4 %s, v%d, s[%d:%d], s%d offen offset:%d" % (ar(aX(s, q), 4), V_X, S_X, S_X + 3, S_QT + q, s * 64))
        last_load[s] = a.vm_seq
        if s % 2 == 1 and s // 2 < 7:
            grp_id[s // 2] = init_group(s // 2)
    def qmfmas(s):
        l = []
        for q in range(5):
            for jp in range(2):
                for u in range(2):
                    acc = vr(vACC(jp, u, q), 4)
                    l.append("%s %s, %s, %s, %s" % (MFMA, acc, vr(V_AF + (s & 1) * 16 + (jp * 2 + u) * 4, 4), ar(aX(s, q), 4), "0" if s == 0 else acc))
        return l
    for s in range(D):
        issue_loads(s)
    for s in range(17):
        if s < 16:
            a.wait_vm(last_load[s])
            for i in range(4):
                a("ds_write_b128 v%d, %s offset:%d" % (V_SW, vr(V_WS + (s % D) * 16 + i * 4, 4), i * 1024))
            for jp in range(2):
                for u in range(2):
                    for hf in range(2):
                        a("ds_read_b64_tr_b16 %s, v%d offset:%d" % (vr(V_AF + (s & 1) * 16 + (jp * 2 + u) * 4 + hf * 2, 2), V_SR0 if jp == 0 else V_SR1, hf * 512 + 8 * u))
            if s + D < 16:
                issue_loads(s + D)
        if s >= 1:
            a("s_waitcnt lgkmcnt(%d)" % (12 if s < 16 else 0))
            for m in qmfmas(s - 1):
                a(m)
    stamp(a, opt, 1)
    a("s_nop 7")
    a("s_lshl_b32 s29, s%d, 13" % S_W)
    a("s_add_u32 s29, s29, %d" % LDS_SCR)
    a("v_add_u32 v34, s29, v%d" % V_LIN)
    a("s_xor_b32 s30, s%d, 32768" % S_RING)
    a("s_add_u32 s30, s30, %d" % (7 * 4096))
    a("v_add_u32 v35, s30, v%d" % V_LIN)
    for jp in range(2):
        for q in range(5):
            f = jp * 5 + q
            tb = 8 + (f & 1) * 4
            for u in range(2):
                b = vACC(jp, u, q)
                for r in range(4):
                    a("v_mul_f32 v%d, s%d, v%d" % (b + r, S_SCALE, b + r))
                a("v_cvt_pk_bf16_f32 v%d, v%d, v%d" % (tb + u * 2, b, b + 1))
                a("v_cvt_pk_bf16_f32 v%d, v%d, v%d" % (tb + u * 2 + 1, b + 2, b + 3))
            if f < 8:
                a("ds_write_b128 v34, %s offset:%d" % (vr(tb, 4), f * 1024))
            else:
                a("ds_write_b128 v35, %s offset:%d" % (vr(tb, 4), (f - 8) * 1024))
            for r in range(4):
                a("v_accvgpr_write_b32 a%d, v%d" % (aQ(q, jp) + r, tb + r))
    a("s_waitcnt lgkmcnt(0)")
    a("s_barrier")
    a("s_xor_b32 s29, s29, 8192")
    a("v_add_u32 v34, s29, v%d" % V_LIN)
    a("s_add_u32 s30, s%d, %d" % (S_RING, 7 * 4096))
    a("v_add_u32 v35, s30, v%d" % V_LIN)
    for jp in range(2):
        for q in range(5):
            f = jp * 5 + q
            if f < 8:
                a("ds_read_b128 %s, v34 offset:%d" % (ar(aQ(q, 2 + jp), 4), f * 1024))
            else:
                a("ds_read_b128 %s, v35 offset:%d" % (ar(aQ(q, 2 + jp), 4), (f - 8) * 1024))
    a("s_waitcnt lgkmcnt(0)")
    grp_id[7] = init_group(7)

    def k_reads(buf, kt, slot):
        return ["ds_read_b128 %s, v%d offset:%d" % (vr(vKF(buf, kt, jl), 4), V_KRD + jl, slot * 4096) for jl in range(4)]
    def v_reads(buf, hf, slot):
        return ["ds_read_b64_tr_b16 %s, v%d offset:%d" % (vr(vVF(buf, el) + hf * 2, 2), V_VRD + el, slot * 4096) for el in range(8)]
    for i in range(160):
        a("v_accvgpr_write_b32 a%d, 0" % (A_O + i))
    for i in range(20):
        a("v_mov_b32 v%d, 0" % (V_L + i))
    for i in range(32):
        a("v_mov_b32 v%d, 0" % (vVF(1, 0) + i))
    for i in range(4):
        a("v_mov_b32 v%d, 0" % (V_P + 4 + i))
    a.wait_vm(grp_id[1])
    for kt in range(2):
        for i in k_reads(0, kt, kt): a(i)
    a.wait_vm(grp_id[3])
    for hf in range(2):
        for i in v_reads(0, hf, 2 + hf): a(i)
    a("s_waitcnt lgkmcnt(0)")
    for part in range(4):
        kind = 'K' if part < 2 else 'V'
        a("s_mov_b32 s%d, %d" % (S_T1, 2 * 8192 + (part & 1) * 4096))
        ins = dma_group(kind, part, S_T1)
        a(ins[0]); a("s_nop 0")
        for i in ins[1:]:
            a.vmem(i)
    for q in range(5):
        d = vr(V_NEGM + q * 4, 4)
        for jl in range(4):
            a("%s %s, %s, %s, %s" % (MFMA, d, vr(vKF(0, 0, jl), 4), ar(aQ(q, jl), 4), "0" if jl == 0 else d))
    a("s_nop 7")
    for q in range(5):
        b = V_NEGM + q * 4
        a("v_max3_f32 v%d, v%d, v%d, v%d" % (b, b, b + 1, b + 2))
        a("v_max_f32 v%d, v%d, v%d" % (b, b, b + 3))
        a("v_mov_b32 v%d, v%d" % (b + 1, b))
    a("s_nop 1")
    for q in range(5):
        b = V_NEGM + q * 4
        a("v_permlane32_swap_b32 v%d, v%d" % (b, b + 1))
    a("s_nop 1")
    for q in range(5):
        b = V_NEGM + q * 4
        a("v_max_f32 v%d, v%d, v%d" % (b, b, b + 1))
        a("v_mov_b32 v%d, v%d" % (b + 1, b))
    a("s_nop 1")
    for q in range(5):
        b = V_NEGM + q * 4
        a("v_permlane16_swap_b32 v%d, v%d" % (b, b + 1))
    a("s_nop 1")
    for q in range(5):
        b = V_NEGM + q * 4
        a("v_max_f32 v%d, v%d, v%d" % (b, b, b + 1))
        a("v_sub_f32 v%d, 0, v%d" % (b, b))
        a("v_mov_b32 v%d, v%d" % (b + 1, b))
        a("v_mov_b32 v%d, v%d" % (b + 2, b))
        a("v_mov_b32 v%d, v%d" % (b + 3, b))
    a("s_nop 1")
    def s_mfmas(buf, q, sb):
        l = []
        for jl in range(4):
            for kt in range(2):
                d = vr(V_S + sb * 8 + kt * 4, 4)
                l.append("%s %s, %s, %s, %s" % (MFMA, d, vr(vKF(buf, kt, jl), 4), ar(aQ(q, jl), 4), vr(V_NEGM + q * 4, 4) if jl == 0 else d))
        return l
    def pv_mfmas(buf, q, pb):
        l = []
        p = vr(V_P + pb * 4, 4)
        for el in range(8):
            d = ar(aO(el, q), 4)
            l.append("%s %s, %s, %s, %s" % (MFMA, d, vr(vVF(buf, el), 4), p, d))
        d = vr(V_L + q * 4, 4)
        l.append("%s %s, %s, %s, %s" % (MFMA, d, vr(V_ONES, 4), p, d))
        return l
    for m in s_mfmas(0, 0, 0):
        a(m)
    a("s_mov_b32 s%d, %d" % (S_ST0, 3 * 8192))
    a("s_mov_b32 s%d, %d" % (S_ST1, 3 * 8192 + 4096))
    a("s_mov_b32 s%d, 8" % S_CNT)
    stamp(a, opt, 2)
    a("s_nop 4")
    a.label("L_attn_loop")
    for tp in range(2):
        for q in range(5):
            i = tp * 5 + q
            sb = i & 1
            if q < 4:
                sm = s_mfmas(tp, q + 1, (i + 1) & 1)
            else:
                sm = s_mfmas(tp ^ 1, 0, (i + 1) & 1)
            if q > 0:
                pm = pv_mfmas(tp, q - 1, (i - 1) & 1)
            else:
                pm = pv_mfmas(tp ^ 1, 4, (i - 1) & 1)
            mf = sm + pm
            if opt.nomfma:
                mf = ["s_nop 0"] * 2
            fill = []
            nb = tp ^ 1
            mem = []
            if q >= 1:
                part = q - 1
                kind = 'K' if part < 2 else 'V'
                ins = dma_group(kind, nb * 4 + part, S_ST0 if (part & 1) == 0 else S_ST1)
                mem.append((4, ["s_waitcnt lgkmcnt(0)", ins[0]]))
                for x in ins[1:]:
                    mem.append((opt.dmacost, [x]))
                if q == 4:
                    mem.append((4, ["s_add_u32 s%d, s%d, 8192" % (S_ST0, S_ST0), "s_add_u32 s%d, s%d, 8192" % (S_ST1, S_ST1)]))
            if q < 4:
                part = q
                rd = k_reads(nb, part, nb * 4 + part) if part < 2 else v_reads(nb, part - 2, nb * 4 + part)
                mem.append((2, ["s_waitcnt vmcnt(28)"]))
                for x in rd:
                    mem.append((4, [x]))
            val = []
            if not opt.novalu:
                sbase = V_S + sb * 8
                pbase = V_P + sb * 4
                for k in range(8):
                    val.append((8, ["v_exp_f32 v%d, v%d" % (sbase + k, sbase + k)]))
                    if k >= 2 and k % 2 == 0:
                        kk = k - 2
                        val.append((4, ["v_cvt_pk_bf16_f32 v%d, v%d, v%d" % (pbase + kk // 2, sbase + kk, sbase + kk + 1)]))
                val.append((4, ["s_nop 0", "v_cvt_pk_bf16_f32 v%d, v%d, v%d" % (pbase + 3, sbase + 6, sbase + 7)]))
            tv = sum(c for c, _ in val) or 1
            tm = sum(c for c, _ in mem) or 1
            av = am = 0.0
            iv = im = 0
            while iv < len(val) or im < len(mem):
                if im >= len(mem) or (iv < len(val) and av / tv <= am / tm):
                    fill.append(val[iv]); av += val[iv][0]; iv += 1
                else:
                    fill.append(mem[im]); am += mem[im][0]; im += 1
            a.c("tile parity %d step %d" % (tp, q))
            interleave(a, mf, fill)
    a("s_sub_u32 s%d, s%d, 1" % (S_CNT, S_CNT))
    a("s_cmp_lg_u32 s%d, 0" % S_CNT)
    a("s_cbranch_scc1 L_attn_loop")
    a("s_nop 1")
    for m in pv_mfmas(1, 4, 1):
        a(m)
    stamp(a, opt, 3)
    a("s_waitcnt vmcnt(0) lgkmcnt(0)")
    a("s_nop 7")
    a("v_add_u32 v34, s%d, v%d" % (S_RING, V_LIN))
    for el in range(4, 8):
        for q in range(5):
            a("ds_write_b128 v34, %s offset:%d" % (ar(aO(el, q), 4), ((el - 4) * 5 + q) * 1024))
    for q in range(5):
        a("v_mov_b32 v%d, v%d" % (8 + q, V_NEGM + q * 4))
        a("v_mov_b32 v%d, v%d" % (13 + q, V_L + q * 4))
    a("ds_write_b128 v34, v[8:11] offset:%d" % (20 * 1024))
    a("ds_write_b128 v34, v[12:15] offset:%d" % (21 * 1024))
    a("ds_write_b128 v34, v[16:19] offset:%d" % (22 * 1024))
    a("s_waitcnt lgkmcnt(0)")
    a("s_barrier")
    a("v_xor_b32 v34, 32768, v34")
    a("ds_read_b128 v[20:23], v34 offset:%d" % (20 * 1024))
    a("ds_read_b128 v[24:27], v34 offset:%d" % (21 * 1024))
    a("ds_read_b128 v[28:31], v34 offset:%d" % (22 * 1024))
    RB = 64
    for el in range(4):
        for q in range(5):
            a("ds_read_b128 %s, v34 offset:%d" % (vr(RB + (el * 5 + q) * 4, 4), (el * 5 + q) * 1024))
    a("s_waitcnt lgkmcnt(15)")
    a("s_waitcnt lgkmcnt(0)")
    GO, GT = 144, 152
    for q in range(5):
        a("v_min_f32 v32, v%d, v%d" % (8 + q, 20 + q))
        a("v_sub_f32 v%d, v32, v%d" % (GO + q, 8 + q))
        a("v_sub_f32 v%d, v32, v%d" % (GT + q, 20 + q))
        a("v_exp_f32 v%d, v%d" % (GO + q, GO + q))
        a("v_exp_f32 v%d, v%d" % (GT + q, GT + q))
        a("s_nop 0")
        a("v_mul_f32 v32, v%d, v%d" % (GO + q, 13 + q))
        a("v_fma_f32 v32, v%d, v%d, v32" % (GT + q, 25 + q))
        a("v_rcp_f32 v32, v32")
        a("s_nop 0")
        a("v_mul_f32 v%d, v%d, v32" % (GO + q, GO + q))
        a("v_mul_f32 v%d, v%d, v32" % (GT + q, GT + q))
    for jp in range(2):
        for q in range(5):
            ob = 160 + ((jp * 5 + q) & 1) * 4
            for half in range(2):
                el = jp * 2 + half
                rb = RB + (el * 5 + q) * 4
                for r in range(4):
                    a("v_accvgpr_read_b32 v%d, a%d" % (168 + r, aO(el, q) + r))
                for r in range(4):
                    a("v_mul_f32 v%d, v%d, v%d" % (168 + r, 168 + r, GO + q))
                for r in range(4):
                    a("v_fma_f32 v%d, v%d, v%d, v%d" % (168 + r, rb + r, GT + q, 168 + r))
                a("v_cvt_pk_bf16_f32 v%d, v168, v169" % (ob + half * 2))
                a("v_cvt_pk_bf16_f32 v%d, v170, v171" % (ob + half * 2 + 1))
            off = (jp * 5 + q) * 1024
            a("s_mov_b32 s29, %d" % (off & ~4095))
            a("buffer_store_dwordx4 %s, v%d, s[%d:%d], s29 offen offset:%d" % (vr(ob, 4), V_LIN, S_O, S_O + 3, off & 4095))
    stamp(a, opt, 4)
    stamp_store(a, opt, 5)
    a.label("L_attn_exit")
    a("s_endpgm")

WS_PART = 16 << 20
def gen_oproj(a, opt):
    S_WO, S_OI, S_P = 4, 8, 12
    a.vm_seq = 0; a.vm_done = 0
    a.label("oproj_kernel")
    a("s_cmp_ge_u32 s2, 256")
    a("s_cbranch_scc1 L_oproj_exit")
    a("s_load_dwordx2 s[36:37], s[0:1], 32")
    a("s_load_dwordx2 s[38:39], s[0:1], 72")
    a("s_load_dwordx2 s[60:61], s[0:1], 96")
    a("v_lshrrev_b32 v1, 6, v0")
    a("v_and_b32 v0, 63, v0")
    a("v_readfirstlane_b32 s%d, v1" % S_W)
    a("s_and_b32 s29, s2, 7")
    a("s_lshr_b32 s70, s29, 1")
    a("s_and_b32 s71, s29, 1")
    a("s_lshr_b32 s30, s2, 3")
    a("s_and_b32 s72, s30, 3")
    a("s_lshr_b32 s73, s30, 2")
    a("s_lshl_b32 s%d, s%d, 15" % (S_RING, S_W))
    a("s_waitcnt lgkmcnt(0)")
    a("s_cmp_eq_u32 s71, 1")
    a("s_cselect_b64 s[74:75], s[38:39], s[36:37]")
    a("s_lshl_b32 s29, s70, 3")
    a("s_lshl_b32 s30, s%d, 1" % S_W)
    a("s_add_u32 s76, s29, s30")
    a("s_lshl_b32 s29, s76, 17")
    a("s_lshl_b32 s30, s72, 8")
    a("s_add_u32 s29, s29, s30")
    a("s_add_u32 s%d, s74, s29" % S_WO)
    a("s_addc_u32 s%d, s75, 0" % (S_WO + 1))
    a("s_and_b32 s%d, s%d, 0xffff" % (S_WO + 1, S_WO + 1))
    a("s_sub_u32 s%d, 0x400000, s29" % (S_WO + 2))
    a("s_mov_b32 s%d, 0x20000" % (S_WO + 3))
    a("s_lshl_b32 s29, s71, 3")
    a("s_add_u32 s29, s29, s73")
    a("s_lshl_b32 s77, s29, 5")
    a("s_add_u32 s29, s77, s76")
    a("s_mul_i32 s29, s29, 20480")
    a("s_add_u32 s%d, s60, s29" % S_OI)
    a("s_addc_u32 s%d, s61, 0" % (S_OI + 1))
    a("s_and_b32 s%d, s%d, 0xffff" % (S_OI + 1, S_OI + 1))
    a("s_mov_b32 s%d, 40960" % (S_OI + 2))
    a("s_mov_b32 s%d, 0x20000" % (S_OI + 3))
    a("s_lshl_b32 s29, s70, 1")
    a("s_add_u32 s29, s29, s71")
    a("s_lshl_b32 s29, s29, 3")
    a("s_add_u32 s29, s29, s73")
    a("s_lshl_b32 s29, s29, 2")
    a("s_add_u32 s29, s29, s72")
    a("s_lshl_b32 s29, s29, 2")
    a("s_add_u32 s29, s29, s%d" % S_W)
    a("s_mul_i32 s29, s29, 10240")
    a("s_add_u32 s29, s29, %d" % WS_PART)
    a("s_add_u32 s%d, s60, s29" % S_P)
    a("s_addc_u32 s%d, s61, 0" % (S_P + 1))
    a("s_and_b32 s%d, s%d, 0xffff" % (S_P + 1, S_P + 1))
    a("s_mov_b32 s%d, 10240" % (S_P + 2))
    a("s_mov_b32 s%d, 0x20000" % (S_P + 3))
    a("v_lshrrev_b32 v1, 4, v0")
    a("v_and_b32 v2, 15, v0")
    V_LIN = 33
    a("v_lshlrev_b32 v%d, 4, v0" % V_LIN)
    a("v_lshlrev_b32 v7, 1, v1")
    a("v_xor_b32 v5, v2, v7")
    a("v_lshlrev_b32 v6, 10, v1")
    for q4 in range(4):
        a("v_xor_b32 v7, %d, v5" % (8 * (q4 & 1)))
        a("v_lshl_add_u32 v7, v7, 4, v6")
        a("v_add_u32 v%d, %d, v7" % (V_KOFF + q4, q4 * 3072))
    a("v_lshrrev_b32 v5, 2, v2")
    a("v_lshl_add_u32 v5, v1, 2, v5")
    a("v_and_b32 v6, 7, v5")
    a("v_lshlrev_b32 v6, 1, v6")
    a("v_bfe_u32 v7, v2, 1, 1")
    a("v_xor_b32 v6, v6, v7")
    a("v_lshlrev_b32 v6, 4, v6")
    a("v_lshl_add_u32 v6, v5, 8, v6")
    a("v_and_b32 v7, 1, v2")
    a("v_lshl_add_u32 v6, v7, 3, v6")
    a("s_lshl_b32 s29, s%d, 6" % S_W)
    a("v_xor_b32 v6, s29, v6")
    a("v_add_u32 v6, s%d, v6" % S_RING)
    for el in range(8):
        a("v_xor_b32 v%d, %d, v6" % (V_VRD + el, 32 * el))
    def dma(slot16):
        a("s_mov_b32 s29, %d" % (slot16 * 16384))
        a("s_add_u32 m0, s%d, %d" % (S_RING, (slot16 % 8) * 4096))
        a("s_nop 0")
        for q4 in range(4):
            a.vmem("buffer_load_dwordx4 v%d, s[%d:%d], s29 offen offset:%d lds" % (V_KOFF + q4, S_WO, S_WO + 3, q4 * 1024))
        return a.vm_seq
    V_OF = 64
    V_AF = 224
    gid = {}
    oid = {}
    def oload(ks):
        for q in range(5):
            off = (ks * 5 + q) * 1024
            a("s_mov_b32 s30, %d" % (off & ~4095))
            a.vmem("buffer_load_dwordx4 %s, v%d, s[%d:%d], s30 offen offset:%d" % (vr(V_OF + (ks * 5 + q) * 4, 4), V_LIN, S_OI, S_OI + 3, off & 4095))
        oid[ks] = a.vm_seq
    for ks in range(4):
        gid[2 * ks] = dma(2 * ks); gid[2 * ks + 1] = dma(2 * ks + 1)
        oload(ks)
    for ks in range(8):
        a.wait_vm(oid[ks])
        a.wait_vm(gid[2 * ks + 1])
        for hf in range(2):
            for el in range(8):
                a("ds_read_b64_tr_b16 %s, v%d offset:%d" % (vr(V_AF + el * 4 + hf * 2, 2), V_VRD + el, ((2 * ks + hf) % 8) * 4096))
        a("s_waitcnt lgkmcnt(0)")
        if ks + 4 < 8:
            gid[2 * (ks + 4)] = dma(2 * (ks + 4)); gid[2 * (ks + 4) + 1] = dma(2 * (ks + 4) + 1)
            oload(ks + 4)
        for el in range(8):
            for q in range(5):
                d = ar(aO(el, q), 4)
                a("%s %s, %s, %s, %s" % (MFMA, d, vr(V_AF + el * 4, 4), vr(V_OF + (ks * 5 + q) * 4, 4), "0" if ks == 0 else d))
    a("s_nop 7")
    a("s_barrier")
    a("v_add_u32 v34, %d, v%d" % (0, V_LIN))
    for p in range(1, 4):
        a("s_xor_b32 s29, s%d, %d" % (S_W, p))
        a("s_mul_i32 s29, s29, 30720")
        a("s_add_u32 s29, s29, %d" % ((p - 1) * 10240))
        a("v_add_u32 v35, s29, v34")
        for h in range(2):
            for q in range(5):
                a("ds_write_b128 v35, %s offset:%d" % (ar(aO(2 * p + h, q), 4), (h * 5 + q) * 1024))
    a("s_waitcnt lgkmcnt(0)")
    a("s_barrier")
    a("s_mul_i32 s29, s%d, 30720" % S_W)
    a("v_add_u32 v35, s29, v34")
    for p in range(3):
        for t in range(10):
            a("ds_read_b128 %s, v35 offset:%d" % (vr(64 + (p * 10 + t) * 4, 4), (p * 10 + t) * 1024))
    a("s_waitcnt lgkmcnt(0)")
    for t in range(10):
        h, q = t // 5, t % 5
        ob = 200 + (t & 1) * 4
        for r in range(4):
            a("v_accvgpr_read_b32 v%d, a%d" % (ob + r, aO(h, q) + r))
        for p in range(3):
            for r in range(4):
                a("v_add_f32 v%d, v%d, v%d" % (ob + r, ob + r, 64 + (p * 10 + t) * 4 + r))
        off = t * 1024
        a("s_mov_b32 s29, %d" % (off & ~4095))
        a("buffer_store_dwordx4 %s, v%d, s[%d:%d], s29 offen offset:%d" % (vr(ob, 4), V_LIN, S_P, S_P + 3, off & 4095))
        a("s_nop 1")
    a.label("L_oproj_exit")
    a("s_endpgm")

def gen_reduce(a, opt):
    a.label("reduce_kernel")
    a("s_cmp_ge_u32 s2, 640")
    a("s_cbranch_scc1 L_reduce_exit")
    a("s_load_dwordx2 s[60:61], s[0:1], 96")
    a("s_load_dwordx2 s[62:63], s[0:1], 80")
    a("v_lshrrev_b32 v1, 6, v0")
    a("v_and_b32 v0, 63, v0")
    a("v_readfirstlane_b32 s24, v1")
    a("s_lshl_b32 s29, s2, 2")
    a("s_add_u32 s29, s29, s24")
    a("s_mul_hi_u32 s30, s29, 0x1999999a")
    a("s_mul_i32 s31, s30, 10")
    a("s_sub_u32 s31, s29, s31")
    a("s_waitcnt lgkmcnt(0)")
    a("s_add_u32 s4, s60, %d" % WS_PART)
    a("s_addc_u32 s5, s61, 0")
    a("s_and_b32 s5, s5, 0xffff")
    a("s_mov_b32 s6, %d" % (4 * 2560 * 1024))
    a("s_mov_b32 s7, 0x20000")
    a("s_mov_b32 s8, s62")
    a("s_and_b32 s9, s63, 0xffff")
    a("s_mov_b32 s10, %d" % (640 * 1024 * 2))
    a("s_mov_b32 s11, 0x20000")
    a("v_lshlrev_b32 v1, 4, v0")
    a("s_lshl_b32 s32, s29, 10")
    for kq in range(4):
        a("buffer_load_dwordx4 %s, v1, s[4:7], s32 offen" % vr(4 + kq * 4, 4))
        a("s_add_u32 s32, s32, %d" % (2560 * 1024))
    a("s_and_b32 s33, s30, 3")
    a("s_lshr_b32 s34, s30, 2")
    a("s_and_b32 s35, s34, 3")
    a("s_lshr_b32 s34, s34, 2")
    a("s_and_b32 s36, s34, 7")
    a("s_lshr_b32 s37, s34, 3")
    a("s_cmp_ge_u32 s31, 5")
    a("s_cselect_b32 s38, 1, 0")
    a("s_mul_i32 s39, s38, 5")
    a("s_sub_u32 s39, s31, s39")
    a("s_mul_i32 s40, s36, 80")
    a("s_lshl_b32 s41, s39, 4")
    a("s_add_u32 s40, s40, s41")
    a("s_lshl_b32 s40, s40, 11")
    a("s_lshl_b32 s41, s37, 9")
    a("s_lshl_b32 s42, s35, 7")
    a("s_add_u32 s41, s41, s42")
    a("s_lshl_b32 s42, s33, 1")
    a("s_add_u32 s42, s42, s38")
    a("s_lshl_b32 s42, s42, 4")
    a("s_add_u32 s41, s41, s42")
    a("s_lshl_b32 s41, s41, 1")
    a("s_add_u32 s40, s40, s41")
    a("v_and_b32 v2, 15, v0")
    a("v_lshrrev_b32 v3, 4, v0")
    a("v_lshlrev_b32 v2, 11, v2")
    a("v_lshl_add_u32 v2, v3, 3, v2")
    a("s_waitcnt vmcnt(0)")
    for r in range(4):
        a("v_add_f32 v%d, v%d, v%d" % (4 + r, 4 + r, 8 + r))
        a("v_add_f32 v%d, v%d, v%d" % (12 + r, 12 + r, 16 + r))
        a("v_add_f32 v%d, v%d, v%d" % (4 + r, 4 + r, 12 + r))
    a("v_cvt_pk_bf16_f32 v20, v4, v5")
    a("v_cvt_pk_bf16_f32 v21, v6, v7")
    a("buffer_store_dwordx2 v[20:21], v2, s[8:11], s40 offen")
    a.label("L_reduce_exit")
    a("s_endpgm")

def kd(name, vgpr, accum, sgpr=102):
    return """.section .rodata,"a"
.p2align 6
.amdhsa_kernel %s
  .amdhsa_next_free_vgpr %d
  .amdhsa_next_free_sgpr %d
  .amdhsa_accum_offset %d
  .amdhsa_group_segment_fixed_size 0
  .amdhsa_kernarg_size 104
  .amdhsa_user_sgpr_count 2
  .amdhsa_user_sgpr_kernarg_segment_ptr 1
  .amdhsa_system_sgpr_workgroup_id_x 1
.end_amdhsa_kernel
""" % (name, vgpr, sgpr, accum)

def main():
    ap = argparse.ArgumentParser()
    ap.add_argument("-o", default="k.s")
    ap.add_argument("--nt", action="store_true")
    ap.add_argument("--k1only", action="store_true")
    ap.add_argument("--nox", action="store_true")
    ap.add_argument("--nowq", action="store_true")
    ap.add_argument("--stamp", action="store_true")
    ap.add_argument("--nomfma", action="store_true")
    ap.add_argument("--novalu", action="store_true")
    ap.add_argument("--qdepth", type=int, default=5)
    ap.add_argument("--dmacost", type=int, default=8)
    opt = ap.parse_args()
    a = Asm()
    hdr = "; generated by work/gen.py\n"
    hdr += "; @launch kernel=attn_kernel grid=(512,1,1) block=(128,1,1) lds=81920\n"
    if not opt.k1only:
        hdr += "; @launch kernel=oproj_kernel grid=(256,1,1) block=(256,1,1) lds=131072\n"
        hdr += "; @launch kernel=reduce_kernel grid=(640,1,1) block=(256,1,1) lds=0\n"
    hdr += '.amdgcn_target "amdgcn-amd-amdhsa--gfx950"\n.text\n'
    hdr += ".globl attn_kernel\n.p2align 8\n.type attn_kernel,@function\n"
    gen_attn(a, opt)
    if not opt.k1only:
        a.lines.append(".globl oproj_kernel\n.p2align 8\n.type oproj_kernel,@function")
        gen_oproj(a, opt)
        a.lines.append(".globl reduce_kernel\n.p2align 8\n.type reduce_kernel,@function")
        gen_reduce(a, opt)
    s = hdr + a.text() + kd("attn_kernel", 512, 256)
    if not opt.k1only:
        s += kd("oproj_kernel", 512, 256) + kd("reduce_kernel", 24, 24, 64)
    open(opt.o, "w").write(s)

if __name__ == "__main__":
    main()
```

```python
import sys, math, argparse
from gen import Asm, vr, ar, sr, f32bits, MFMA, interleave, kd

NAME = "concat_heads__gqa_block_cached__mha_block_cached__near_ridge"
KNAME = NAME + "_kernel"

S_K, S_V, S_X, S_WQ, S_O = 4, 8, 12, 16, 20
S_W = 24; S_RING = 25; S_ST0, S_ST1 = 26, 27; S_CNT = 28
S_WQOFF = 33; S_SCALE = 34; S_WP = 35
S_H0, S_B = 62, 63
S_ROLE = 64
S_HH = 65; S_R = 66; S_XOFF = 67; S_BLK = 68; S_XM0 = 69
S_EXM = 70
S_WM0 = 72
S_STAMP = 100
V_KOFF = 40; V_VOFF = 44; V_KRD = 46; V_VRD = 50; V_XD = 58; V_XD4 = 59; V_ONES = 60
V_KF = 64; V_VF = 128; V_S = 192; V_P = 208; V_NEGM = 216; V_L = 236
V_LIN = 33; V_STAMP = 32; V_TAG = 34
WS_PART = 16 << 20; WS_F1 = 32 << 20; WS_F2 = 33 << 20
S_DBG = 76; S_FL = 80; S_WO = 84; S_OI = 88; S_P = 92; S_OUT = 96
S_RND = 73; S_KQ = 74; S_NQ = 75
V_WD = 16
V_WRD = 20
V_XRD = 26
V_XRD2 = 8
V_QW = 30
A_O = 0; A_Q = 160
def aO(el, q): return A_O + (el * 5 + q) * 4
def aQ(q, j): return A_Q + (q * 4 + j) * 4
def vKF(buf, kt, j): return V_KF + buf * 32 + (kt * 4 + j) * 4
def vVF(buf, e): return V_VF + buf * 32 + e * 4

LDS_SCR = 131072
LDS_TOTAL = 163840

_nst = [0]
STAMP_NAMES = []
def stamp(a, opt, name):
    if opt.stamp:
        if name in STAMP_NAMES:
            i = STAMP_NAMES.index(name)
        else:
            i = len(STAMP_NAMES); STAMP_NAMES.append(str(name))
        a("s_memrealtime s[%d:%d]" % (S_STAMP, S_STAMP + 1))
        a("s_waitcnt lgkmcnt(0)")
        a("v_writelane_b32 v%d, s%d, %d" % (V_STAMP, S_STAMP, i))

def stamp_store(a, opt):
    if not opt.stamp:
        return
    a("s_lshl_b32 s29, s2, 2")
    a("s_add_u32 s29, s29, s%d" % S_W)
    a("s_lshl_b32 s29, s29, 8")
    a("s_add_u32 s29, s29, 0x8000000")
    a("s_add_u32 s%d, s60, s29" % S_X)
    a("s_addc_u32 s%d, s61, 0" % (S_X + 1))
    a("s_and_b32 s%d, s%d, 0xffff" % (S_X + 1, S_X + 1))
    a("s_mov_b32 s%d, 256" % (S_X + 2))
    a("s_mov_b32 s%d, 0x20000" % (S_X + 3))
    a("v_lshlrev_b32 v1, 2, v0")
    a("buffer_store_dword v%d, v1, s[%d:%d], 0 offen" % (V_STAMP, S_X, S_X + 3))

def mk_srd(a, srd, plo, off_sgpr, nbytes):
    a("s_add_u32 s%d, s%d, s%d" % (srd, plo, off_sgpr))
    a("s_addc_u32 s%d, s%d, 0" % (srd + 1, plo + 1))
    a("s_and_b32 s%d, s%d, 0xffff" % (srd + 1, srd + 1))
    if isinstance(nbytes, int):
        a("s_mov_b32 s%d, %d" % (srd + 2, nbytes))
    else:
        a(nbytes % (srd + 2))
    a("s_mov_b32 s%d, 0x20000" % (srd + 3))

_lab = [0]
def newlab(p):
    _lab[0] += 1
    return "L_%s%d" % (p, _lab[0])

def merge(lists):
    tot = [sum(c for c, _ in l) or 1 for l in lists]
    acc = [0.0] * len(lists)
    idx = [0] * len(lists)
    out = []
    while True:
        best = None
        for k, l in enumerate(lists):
            if idx[k] < len(l):
                r = acc[k] / tot[k]
                if best is None or r < best[0]:
                    best = (r, k)
        if best is None:
            break
        k = best[1]
        out.append(lists[k][idx[k]]); acc[k] += lists[k][idx[k]][0]; idx[k] += 1
    return out

def poll(a, voff_setup, srd, name):
    L = newlab(name)
    a("v_and_b32 v1, 3, v0")
    a("v_lshlrev_b32 v1, 3, v1")
    a.label(L)
    a("buffer_load_dwordx2 v[2:3], v1, s[%d:%d], s29 offen sc0 sc1" % (srd, srd + 3))
    a("s_waitcnt vmcnt(0)")
    a("v_cmp_ne_u64 vcc, v[2:3], %s" % vr(V_TAG, 2))
    a("s_nop 4")
    Ld = newlab(name + "d")
    a("s_cbranch_vccz %s" % Ld)
    a("s_sleep 2")
    a("s_branch %s" % L)
    a.label(Ld)

def gen_tail(a, opt):
    L = newlab("tag"); Ld = newlab("tagd")
    a.label(L)
    a("v_readfirstlane_b32 s29, v%d" % V_TAG)
    a("s_nop 3")
    a("s_cmp_lg_u32 s29, 0")
    a("s_cbranch_scc1 %s" % Ld)
    a("s_sleep 2")
    a("v_mov_b32 v1, 0")
    a("buffer_load_dwordx2 %s, v1, s[%d:%d], 0 offen sc0 sc1" % (vr(V_TAG, 2), S_DBG, S_DBG + 3))
    a("s_waitcnt vmcnt(0)")
    a("s_branch %s" % L)
    a.label(Ld)
    a("s_mov_b32 s29, %d" % WS_F1)
    mk_srd(a, S_FL, 60, 29, 2 << 20)
    a("s_lshl_b32 s29, s%d, 7" % S_ROLE)
    a("s_lshl_b32 s30, s%d, 4" % S_B)
    a("s_add_u32 s29, s29, s30")
    a("s_lshr_b32 s30, s%d, 1" % S_H0)
    a("s_add_u32 s29, s29, s30")
    a("s_lshl_b32 s29, s29, 7")
    a("s_lshl_b32 s30, s%d, 3" % S_W)
    a("s_add_u32 s29, s29, s30")
    a("v_mov_b32 v1, 0")
    a("s_waitcnt vmcnt(0)")
    a("s_mov_b64 exec, 1")
    a("buffer_store_dwordx2 %s, v1, s[%d:%d], s29 offen sc0 sc1" % (vr(V_TAG, 2), S_FL, S_FL + 3))
    a("s_mov_b64 exec, -1")
    stamp(a, opt, "flag")
    a("s_cmp_eq_u32 s%d, 1" % S_ROLE)
    a("s_cbranch_scc1 L_fin")
    a("s_and_b32 s29, s2, 7")
    a("s_lshl_b32 s29, s29, 1")
    a("s_bfe_u32 s30, s2, 0x10003")
    a("s_add_u32 s29, s29, s30")
    a("s_lshr_b32 s%d, s29, 2" % S_KQ)
    a("s_and_b32 s%d, s29, 3" % S_NQ)
    a("s_mov_b32 s%d, s56" % S_OUT)
    a("s_and_b32 s%d, s57, 0xffff" % (S_OUT + 1))
    a("s_mov_b32 s%d, %d" % (S_OUT + 2, 640 * 1024 * 2))
    a("s_mov_b32 s%d, 0x20000" % (S_OUT + 3))
    a("s_mov_b32 s%d, 0" % S_RND)
    a("s_barrier")
    a.label("L_round")
    VD, VR = 8, 12
    V_OF = 36; V_AC = 96
    def aW(i, el): return (i * 8 + el) * 4
    def vAC(el, q): return V_AC + (el * 5 + q) * 4
    def vOF(i, q): return V_OF + ((i % 3) * 5 + q) * 4
    a("s_lshl_b32 s31, s%d, 2" % S_KQ)
    a("s_add_u32 s31, s31, s%d" % S_W)
    a("s_lshl_b32 s29, s31, 18")
    a("s_lshl_b32 s30, s%d, 8" % S_NQ)
    a("s_add_u32 s29, s29, s30")
    a("s_cmp_eq_u32 s%d, 1" % S_RND)
    a("s_cselect_b64 s[70:71], s[54:55], s[44:45]")
    mk_srd(a, S_WO, 70, 29, "s_sub_u32 s%d, 0x400000, s29")
    a("s_lshl_b32 s29, s%d, 3" % S_RND)
    a("s_add_u32 s32, s29, s%d" % S_B)
    a("s_lshl_b32 s29, s32, 4")
    a("s_add_u32 s72, s29, s31")
    a("s_mul_i32 s29, s72, 40960")
    mk_srd(a, S_OI, 60, 29, 40960)
    a("s_lshl_b32 s29, s32, 2")
    a("s_add_u32 s29, s29, s%d" % S_NQ)
    a("s_lshl_b32 s29, s29, 2")
    a("s_add_u32 s69, s29, s%d" % S_W)
    a("s_mul_i32 s29, s69, 40960")
    a("s_add_u32 s29, s29, %d" % WS_PART)
    mk_srd(a, S_P, 60, 29, 40960)
    a("v_lshrrev_b32 v1, 4, v0")
    a("v_and_b32 v2, 15, v0")
    a("v_lshlrev_b32 v7, 1, v1")
    a("v_xor_b32 v5, v2, v7")
    a("v_lshlrev_b32 v6, 10, v1")
    for q4 in range(4):
        a("v_xor_b32 v7, %d, v5" % (8 * (q4 & 1)))
        a("v_lshl_add_u32 v7, v7, 4, v6")
        a("v_add_u32 v%d, %d, v7" % (VD + q4, q4 * 3072))
    a("v_lshrrev_b32 v5, 2, v2")
    a("v_lshl_add_u32 v5, v1, 2, v5")
    a("v_and_b32 v6, 7, v5")
    a("v_lshlrev_b32 v6, 1, v6")
    a("v_bfe_u32 v7, v2, 1, 1")
    a("v_xor_b32 v6, v6, v7")
    a("v_lshlrev_b32 v6, 4, v6")
    a("v_lshl_add_u32 v6, v5, 8, v6")
    a("v_and_b32 v7, 1, v2")
    a("v_lshl_add_u32 v6, v7, 3, v6")
    a("s_lshl_b32 s29, s%d, 6" % S_W)
    a("v_xor_b32 v6, s29, v6")
    a("v_add_u32 v6, s%d, v6" % S_BLK)
    for el in range(8):
        a("v_xor_b32 v%d, %d, v6" % (VR + el, 32 * el))
    def wo_dma(i):
        a("s_xor_b32 s29, s%d, %d" % (S_B, i))
        a("s_lshl_b32 s29, s29, 15")
        for hf in range(2):
            a("s_add_u32 m0, s%d, %d" % (S_BLK, ((2 * i + hf) % 8) * 4096))
            if hf: a("s_add_u32 s29, s29, 16384")
            else: a("s_nop 0")
            for q4 in range(4):
                a("buffer_load_dwordx4 v%d, s[%d:%d], s29 offen offset:%d lds" % (VD + q4, S_WO, S_WO + 3, q4 * 1024))
    for i in range(4):
        wo_dma(i)
    for i in range(8):
        a("s_waitcnt vmcnt(%d)" % (8 * min(3, 7 - i)))
        for hf in range(2):
            for el in range(8):
                a("ds_read_b64_tr_b16 %s, v%d offset:%d" % (ar(aW(i, el) + hf * 2, 2), VR + el, ((2 * i + hf) % 8) * 4096))
        if i + 4 < 8:
            a("s_waitcnt lgkmcnt(0)")
            wo_dma(i + 4)
    stamp(a, opt, "P")
    a("s_lshl_b32 s29, s72, 7")
    poll(a, None, S_FL, "pf")
    stamp(a, opt, "f1")
    def o_ld(i):
        l = []
        for q in range(5):
            pre = []
            if q == 0:
                pre = ["s_xor_b32 s30, s%d, %d" % (S_B, i), "s_mul_i32 s30, s30, 5120"]
            if q == 4:
                pre = ["s_add_u32 s30, s30, 4096"]
            l.append(pre + ["buffer_load_dwordx4 %s, v%d, s[%d:%d], s30 offen offset:%d sc0 sc1" % (vr(vOF(i, q), 4), V_LIN, S_OI, S_OI + 3, (q % 4) * 1024)])
        return l
    for i in range(3):
        for g in o_ld(i):
            for x in g: a(x)
    a("s_waitcnt lgkmcnt(0)")
    for i in range(8):
        a("s_waitcnt vmcnt(%d)" % (5 * min(2, 7 - i)))
        for q in range(5):
            for el in range(8):
                d = vr(vAC(el, q), 4)
                a("%s %s, %s, %s, %s" % (MFMA, d, ar(aW(i, el), 4), vr(vOF(i, q), 4), "0" if i == 0 else d))
            if i + 3 < 8:
                for x in o_ld(i + 3)[q]: a(x)
    stamp(a, opt, "M")
    a("s_nop 7")
    a("s_barrier")
    for p in range(1, 4):
        a("s_xor_b32 s29, s%d, %d" % (S_W, p))
        a("s_mul_i32 s29, s29, 30720")
        a("s_add_u32 s29, s29, %d" % ((p - 1) * 10240))
        a("v_add_u32 v1, s29, v%d" % V_LIN)
        for h in range(2):
            for q in range(5):
                a("ds_write_b128 v1, %s offset:%d" % (vr(vAC(2 * p + h, q), 4), (h * 5 + q) * 1024))
    a("s_waitcnt lgkmcnt(0)")
    a("s_barrier")
    a("s_mul_i32 s29, s%d, 30720" % S_W)
    a("v_add_u32 v1, s29, v%d" % V_LIN)
    RB = vAC(2, 0)
    for p in range(3):
        for t in range(10):
            a("ds_read_b128 %s, v1 offset:%d" % (vr(RB + (p * 10 + t) * 4, 4), (p * 10 + t) * 1024))
    a("s_mul_i32 s30, s%d, 10240" % S_KQ)
    a("s_waitcnt lgkmcnt(0)")
    a("s_barrier")
    for t in range(10):
        ob = V_AC + t * 4
        for p in range(3):
            for r in (0, 2):
                a("v_pk_add_f32 %s, %s, %s" % (vr(ob + r, 2), vr(ob + r, 2), vr(RB + (p * 10 + t) * 4 + r, 2)))
        if t % 4 == 0 and t:
            a("s_add_u32 s30, s30, 4096")
        a("buffer_store_dwordx4 %s, v%d, s[%d:%d], s30 offen offset:%d sc0 sc1" % (vr(ob, 4), V_LIN, S_P, S_P + 3, (t % 4) * 1024))
    a("s_lshl_b32 s29, s69, 7")
    a("s_add_u32 s29, s29, %d" % (WS_F2 - WS_F1))
    a("s_lshl_b32 s30, s%d, 3" % S_KQ)
    a("s_add_u32 s30, s30, s29")
    a("v_mov_b32 v1, 0")
    a("s_waitcnt vmcnt(0)")
    a("s_mov_b64 exec, 1")
    a("buffer_store_dwordx2 %s, v1, s[%d:%d], s30 offen sc0 sc1" % (vr(V_TAG, 2), S_FL, S_FL + 3))
    a("s_mov_b64 exec, -1")
    stamp(a, opt, "R")
    poll(a, None, S_FL, "pg")
    stamp(a, opt, "f2")
    for i in range(3):
        a("s_add_u32 s29, s%d, %d" % (S_KQ, 4 * i))
        a("s_lshl_b32 s30, s29, 10")
        a("s_cmp_ge_u32 s29, 10")
        a("s_cselect_b32 s30, 0x40000000, s30")
        for k in range(4):
            a("buffer_load_dwordx4 %s, v%d, s[%d:%d], s30 offen sc0 sc1" % (vr(V_OF + (i * 4 + k) * 4, 4), V_LIN, S_P, S_P + 3))
            a("s_add_u32 s30, s30, 10240")
    a("v_and_b32 v2, 15, v0")
    a("v_lshrrev_b32 v3, 4, v0")
    a("v_lshlrev_b32 v2, 11, v2")
    a("v_lshl_add_u32 v2, v3, 3, v2")
    a("s_mul_i32 s31, s%d, %d" % (S_B, 80 * 2048))
    a("s_lshl_b32 s29, s%d, 10" % S_RND)
    a("s_add_u32 s31, s31, s29")
    a("s_lshl_b32 s29, s%d, 8" % S_NQ)
    a("s_add_u32 s31, s31, s29")
    a("s_lshl_b32 s29, s%d, 6" % S_W)
    a("s_add_u32 s31, s31, s29")
    for i in range(3):
        a("s_add_u32 s29, s%d, %d" % (S_KQ, 4 * i))
        a("s_lshl_b32 s30, s29, 15")
        a("s_add_u32 s30, s30, s31")
        a("s_sub_u32 s32, s30, %d" % (5 * 32768 - 32))
        a("s_cmp_ge_u32 s29, 5")
        a("s_cselect_b32 s30, s32, s30")
        a("s_cmp_ge_u32 s29, 10")
        a("s_cselect_b32 s30, 0x40000000, s30")
        a("s_waitcnt vmcnt(%d)" % (8 - 4 * i + i))
        b0 = V_OF + i * 16
        for r in (0, 2):
            a("v_pk_add_f32 %s, %s, %s" % (vr(b0 + r, 2), vr(b0 + r, 2), vr(b0 + 4 + r, 2)))
            a("v_pk_add_f32 %s, %s, %s" % (vr(b0 + 8 + r, 2), vr(b0 + 8 + r, 2), vr(b0 + 12 + r, 2)))
            a("v_pk_add_f32 %s, %s, %s" % (vr(b0 + r, 2), vr(b0 + r, 2), vr(b0 + 8 + r, 2)))
        a("v_cvt_pk_bf16_f32 v%d, v%d, v%d" % (b0 + 4, b0, b0 + 1))
        a("v_cvt_pk_bf16_f32 v%d, v%d, v%d" % (b0 + 5, b0 + 2, b0 + 3))
        a("buffer_store_dwordx2 %s, v2, s[%d:%d], s30 offen" % (vr(b0 + 4, 2), S_OUT, S_OUT + 3))
    if opt.stamp:
        stamp(a, opt, "rend")
        L2 = newlab("r0")
        a("s_cmp_eq_u32 s%d, 1" % S_RND)
        a("s_cbranch_scc1 %s" % L2)
        stamp(a, opt, "rAend")
        a.label(L2)
    a("s_add_u32 s%d, s%d, 1" % (S_RND, S_RND))
    a("s_cmp_lt_u32 s%d, 2" % S_RND)
    a("s_cbranch_scc1 L_round")
    a.label("L_fin")

def gen(a, opt):
    nt = " nt" if opt.nt else ""
    a.label(KNAME)
    a("s_cmp_ge_u32 s2, 256")
    a("s_cbranch_scc1 L_exit")
    if opt.stamp: a("v_mov_b32 v%d, 0" % V_STAMP)
    stamp(a, opt, "start")
    a("s_load_dwordx16 s[36:51], s[0:1], 0")
    a("s_load_dwordx8 s[52:59], s[0:1], 64")
    a("s_load_dwordx2 s[60:61], s[0:1], 96")
    a("v_lshrrev_b32 v1, 6, v0")
    a("v_and_b32 v0, 63, v0")
    a("v_readfirstlane_b32 s%d, v1" % S_W)
    a("s_and_b32 s30, s2, 7")
    a("s_lshr_b32 s31, s2, 3")
    a("s_cmp_lt_u32 s31, 16")
    a("s_cselect_b32 s%d, 1, 0" % S_ROLE)
    a("s_and_b32 s32, s31, 1")
    a("s_bfe_u32 s%d, s31, 0x30001" % S_B)
    a("s_lshl_b32 s30, s30, 2")
    a("s_lshl_b32 s29, s32, 1")
    a("s_add_u32 s%d, s30, s29" % S_H0)
    if opt.hx:
        a("s_lshl_b32 s29, s%d, 2" % S_ROLE)
        a("s_xor_b32 s%d, s%d, s29" % (S_H0, S_H0))
    a("s_lshl_b32 s%d, s%d, 1" % (S_R, S_B))
    a("s_lshl_b32 s32, s32, 3")
    if opt.perm == 1:
        a("s_xor_b32 s%d, s%d, s32" % (S_R, S_R))
    if not opt.perm:
        a("s_mov_b32 s%d, 0" % S_R)
    a("s_lshl_b32 s%d, s%d, 15" % (S_BLK, S_W))
    a("s_and_b32 s%d, s%d, 1" % (S_WP, S_W))
    a("s_lshr_b32 s%d, s%d, 1" % (S_HH, S_W))
    a("s_mov_b32 s%d, 0x%x" % (S_SCALE, f32bits(128 ** -0.5 * math.log2(math.e))))
    a("s_lshl_b32 s%d, s%d, 10" % (S_XM0, S_W))
    a("v_lshrrev_b32 v1, 4, v0")
    a("v_and_b32 v2, 15, v0")
    a("v_lshlrev_b32 v%d, 4, v0" % V_LIN)
    a("v_xor_b32 v5, v2, v1")
    a("v_lshlrev_b32 v6, 8, v1")
    for q4 in range(4):
        a("v_xor_b32 v7, %d, v5" % (4 * q4))
        a("v_lshl_add_u32 v%d, v7, 4, v6" % (V_KOFF + q4))
    a("v_lshlrev_b32 v7, 1, v1")
    a("v_xor_b32 v5, v2, v7")
    for qq in range(2):
        a("v_xor_b32 v7, %d, v5" % (8 * qq))
        a("v_lshl_add_u32 v%d, v7, 4, v6" % (V_VOFF + qq))
    a("s_lshl_b32 s29, s%d, 2" % S_W)
    a("v_add_u32 v3, s29, v1")
    a("v_xor_b32 v4, v3, v2")
    a("v_lshlrev_b32 v4, 4, v4")
    a("v_lshl_add_u32 v%d, v3, 10, v4" % V_XD)
    a("v_lshrrev_b32 v3, 3, v0")
    a("v_and_b32 v4, 7, v0")
    a("v_and_b32 v5, 2, v3")
    a("v_xor_b32 v4, v4, v5")
    a("v_lshlrev_b32 v4, 4, v4")
    a("v_lshl_add_u32 v%d, v3, 13, v4" % V_WD)
    a("v_xor_b32 v4, 64, v%d" % V_WD)
    a("v_add_u32 v%d, %d, v4" % (V_WD + 1, 64512))
    a("v_add_u32 v%d, %d, v%d" % (V_WD + 2, 2 * 64512, V_WD))
    a("v_add_u32 v%d, %d, v4" % (V_WD + 3, 3 * 64512))
    a("s_mul_i32 s32, s%d, 81920" % S_B)
    a("s_lshl_b32 s29, s%d, 8" % S_H0)
    a("s_lshl_b32 s30, s%d, 7" % S_W)
    a("s_add_u32 s29, s29, s30")
    a("s_lshl_b32 s30, s%d, 5" % S_B)
    a("s_add_u32 s30, s30, s%d" % S_H0)
    a("s_add_u32 s30, s30, s%d" % S_HH)
    a("s_lshr_b32 s31, s30, 2")
    a("s_cmp_eq_u32 s%d, 1" % S_ROLE)
    a("s_cselect_b32 s31, s30, s31")
    a("s_lshl_b32 s31, s31, 18")
    a("s_lshl_b32 s73, s%d, 17" % S_WP)
    a("s_add_u32 s31, s31, s73")
    a("s_lshl_b32 s73, s%d, 8" % S_ROLE)
    a("s_add_u32 s30, s30, s73")
    a("s_mul_i32 s30, s30, 20480")
    a("s_mul_i32 s73, s%d, 10240" % S_WP)
    a("s_add_u32 s30, s30, s73")
    a("s_waitcnt lgkmcnt(0)")
    stamp(a, opt, "karg")
    if not opt.k1only:
        a("s_or_b32 s73, s2, s%d" % S_W)
        a("s_cmp_lg_u32 s73, 0")
        a("s_cbranch_scc1 L_notag")
        a("s_memrealtime s[74:75]")
        a("s_mov_b32 s76, s58")
        a("s_and_b32 s77, s59, 0xffff")
        a("s_mov_b32 s78, 256")
        a("s_mov_b32 s79, 0x20000")
        a("s_waitcnt lgkmcnt(0)")
        a("s_or_b32 s74, s74, 1")
        a("v_mov_b32 v8, s74")
        a("v_mov_b32 v9, s75")
        a("v_mov_b32 v10, 0")
        a("s_mov_b64 exec, 1")
        a("buffer_store_dwordx2 v[8:9], v10, s[76:79], 0 offen sc0 sc1")
        a("s_mov_b64 exec, -1")
        a.label("L_notag")
    a("s_cmp_eq_u32 s%d, 1" % S_ROLE)
    a("s_cselect_b64 s[74:75], s[46:47], s[36:37]")
    a("s_cselect_b64 s[76:77], s[52:53], s[42:43]")
    a("s_cselect_b64 s[78:79], s[48:49], s[38:39]")
    a("s_cselect_b64 s[80:81], s[50:51], s[40:41]")
    mk_srd(a, S_K, 78, 31, 131072)
    mk_srd(a, S_V, 80, 31, 131072)
    mk_srd(a, S_X, 74, 32, 81920)
    mk_srd(a, S_WQ, 76, 29, "s_sub_u32 s%d, 0x400000, s29")
    mk_srd(a, S_O, 60, 30, 10240)

    def dma_group(kind, slot, soff):
        ins = ["s_add_u32 m0, s%d, %d" % (S_BLK, slot * 4096)]
        srd = S_K if kind == 'K' else S_V
        for q4 in range(4):
            v = V_KOFF + q4 if kind == 'K' else V_VOFF + (q4 & 1)
            ins.append("buffer_load_dwordx4 v%d, s[%d:%d], s%d offen offset:%d%s lds" % (v, srd, srd + 3, soff, q4 * 1024, nt))
        return ins
    def group_ins(g, tile_add=0, st=30):
        t, part = g // 4, g % 4
        kind = 'K' if part < 2 else 'V'
        ins = dma_group(kind, g, st)
        return [ins[0], "s_mov_b32 s%d, %d" % (st, (t + tile_add) * 8192 + (part & 1) * 4096)] + ins[1:]
    def a_half(part, m0base, ldsoff, soff):
        srd, v = (S_K, V_KOFF) if part < 2 else (S_V, V_VOFF)
        ins = ["s_add_u32 m0, s%d, %d" % (m0base, ldsoff + part * 4096)]
        for i in range(2):
            ins.append("buffer_load_dwordx4 v%d, s[%d:%d], s%d offen offset:%d lds" % (v + i, srd, srd + 3, soff, i * 1024))
        return ins

    if opt.bpre:
        a("s_cmp_eq_u32 s%d, 0" % S_ROLE)
        a("s_cbranch_scc1 L_nopre")
        for g in range(4):
            for i in group_ins(g): a(i)
        a.label("L_nopre")
    a.vm_seq = 0; a.vm_done = 0
    ids = {}
    def xunit(cp, q):
        u = cp * 5 + q
        return LDS_SCR + u * 4096 if u < 8 else (u - 8) * 32768 + 28672
    def x_dma(c):
        l = []
        for q in range(5):
            pre = []
            if q == 0:
                pre = ["s_lshr_b32 s%d, s%d, 2" % (S_XOFF, S_R), "s_xor_b32 s%d, s%d, %d" % (S_XOFF, S_XOFF, c), "s_lshl_b32 s%d, s%d, 8" % (S_XOFF, S_XOFF)]
            else:
                pre = ["s_add_u32 s%d, s%d, 16384" % (S_XOFF, S_XOFF)]
            l.append(["s_add_u32 m0, s%d, %d" % (S_XM0, xunit(c & 1, q))] + pre +
                     ["buffer_load_dwordx4 v%d, s[%d:%d], s%d offen lds" % (V_XD, S_X, S_X + 3, S_XOFF)])
        return l
    def stage_dma(s):
        sg = (s + 2) % 3
        l = []
        for i in range(4):
            pre = []
            if i == 0:
                pre = ["s_add_u32 m0, s%d, %d" % (S_BLK, 16384 + sg * 4096),
                       "s_xor_b32 s%d, s%d, %d" % (S_WQOFF, S_R, s),
                       "s_lshl_b32 s%d, s%d, 18" % (S_WQOFF, S_WQOFF)]
            l.append(pre + ["buffer_load_dwordx4 v%d, s[%d:%d], s%d offen offset:%d lds" % (V_WD + i, S_WQ, S_WQ + 3, S_WQOFF, i * 1024)])
        return l
    def emit_now(groups, key):
        for g in groups:
            for i in g: a(i)
            a.vm_seq += 1
        ids[key] = a.vm_seq
    emit_now(x_dma(0), ('x', 0))
    for s in range(3):
        emit_now(stage_dma(s), s)
    emit_now(x_dma(1), ('x', 1))
    stamp(a, opt, "iss")
    a("v_lshrrev_b32 v5, 2, v2")
    a("v_lshl_add_u32 v6, v1, 3, v5")
    a("v_and_b32 v5, 2, v5")
    a("v_and_b32 v7, 1, v1")
    a("v_lshl_or_b32 v5, v7, 2, v5")
    a("v_bfe_u32 v7, v2, 1, 1")
    a("v_xor_b32 v5, v5, v7")
    a("v_lshlrev_b32 v5, 4, v5")
    a("v_lshl_add_u32 v5, v6, 7, v5")
    a("v_and_b32 v7, 1, v2")
    a("v_lshl_add_u32 v5, v7, 3, v5")
    a("v_add_u32 v5, s%d, v5" % S_BLK)
    a("v_add_u32 v5, 16384, v5")
    for t in range(4):
        a("v_xor_b32 v%d, %d, v5" % (V_WRD + t, 32 * t))
    a("v_xor_b32 v5, v1, v2")
    a("v_lshlrev_b32 v5, 4, v5")
    a("v_lshl_add_u32 v5, v2, 8, v5")
    a("s_and_b32 s29, s%d, 3" % S_R)
    a("s_lshl_b32 s29, s29, 6")
    a("v_xor_b32 v5, s29, v5")
    for k in range(4):
        a("v_xor_b32 v%d, %d, v5" % (V_XRD2 + k, 64 * k))
        a("v_add_u32 v%d, %d, v%d" % (V_XRD + k, LDS_SCR, V_XRD2 + k))
    a("v_lshrrev_b32 v5, 1, v1")
    a("v_lshlrev_b32 v5, 8, v5")
    a("v_lshl_add_u32 v5, v2, 4, v5")
    a("v_and_b32 v7, 1, v1")
    a("v_lshl_add_u32 v5, v7, 3, v5")
    a("s_lshl_b32 s29, s%d, 13" % S_W)
    a("s_add_u32 s29, s29, %d" % LDS_SCR)
    a("v_add_u32 v%d, s29, v5" % V_QW)
    a("v_add_u32 v%d, s%d, v5" % (V_QW + 1, S_BLK))
    a("s_lshl_b32 s29, s%d, 16" % S_WP)
    a("s_cmp_eq_u32 s%d, 1" % S_ROLE)
    a("s_cselect_b32 s%d, s%d, s29" % (S_RING, S_BLK))
    a("v_xor_b32 v5, v1, v2")
    a("v_lshlrev_b32 v5, 4, v5")
    a("v_lshl_add_u32 v5, v2, 8, v5")
    a("s_lshl_b32 s29, s%d, 7" % S_WP)
    a("v_xor_b32 v5, s29, v5")
    a("v_add_u32 v5, s%d, v5" % S_RING)
    for k in range(4):
        a("v_xor_b32 v%d, %d, v5" % (V_KRD + k, 64 * k))
    a("v_lshrrev_b32 v5, 2, v2")
    a("v_lshl_add_u32 v5, v1, 2, v5")
    a("v_and_b32 v6, 7, v5")
    a("v_lshlrev_b32 v6, 1, v6")
    a("v_bfe_u32 v7, v2, 1, 1")
    a("v_xor_b32 v6, v6, v7")
    a("v_lshlrev_b32 v6, 4, v6")
    a("v_lshl_add_u32 v6, v5, 8, v6")
    a("v_and_b32 v7, 1, v2")
    a("v_lshl_add_u32 v6, v7, 3, v6")
    a("v_xor_b32 v6, s29, v6")
    a("v_add_u32 v6, s%d, v6" % S_RING)
    for el in range(8):
        a("v_xor_b32 v%d, %d, v6" % (V_VRD + el, 32 * el))
    for i in range(4):
        a("v_mov_b32 v%d, 0x3f803f80" % (V_ONES + i))
    a("v_mov_b32 v6, s%d" % S_SCALE)
    a("v_mov_b32 v7, s%d" % S_SCALE)
    V_XF = 64; V_AF = 104; V_ACC = 176
    def vACC(t, q): return V_ACC + (t * 5 + q) * 4
    def vw(s):
        idx = ids[s]
        if idx <= a.vm_done: return []
        n = a.vm_seq - idx
        assert 0 <= n <= 63, n
        a.vm_done = idx
        return ["s_waitcnt vmcnt(%d)" % n]
    def st_reads(s):
        sg = (s + 2) % 3
        c, k4 = s // 4, s % 4
        l = []
        for q in range(5):
            ad = xunit(c & 1, q)
            if ad >= LDS_SCR:
                l.append("ds_read_b128 %s, v%d offset:%d" % (vr(V_XF + (s & 1) * 20 + q * 4, 4), V_XRD + k4, ad - LDS_SCR))
            else:
                l.append("ds_read_b128 %s, v%d offset:%d" % (vr(V_XF + (s & 1) * 20 + q * 4, 4), V_XRD2 + k4, ad))
        for t in range(4):
            for hf in range(2):
                l.append("ds_read_b64_tr_b16 %s, v%d offset:%d" % (vr(V_AF + (s & 1) * 16 + t * 4 + hf * 2, 2), V_WRD + t, sg * 4096 + hf * 512))
        return l
    def q_mf(s):
        l = []
        for q in range(5):
            for t in range(4):
                acc = vr(vACC(t, q), 4)
                l.append("%s %s, %s, %s, %s" % (MFMA, acc, vr(V_AF + (s & 1) * 16 + t * 4, 4), vr(V_XF + (s & 1) * 20 + q * 4, 4), "0" if s == 0 else acc))
        return l
    for r in range(160):
        a("v_accvgpr_write_b32 a%d, 0" % r)
    for i in vw(0): a(i)
    a("s_barrier")
    stamp(a, opt, "st0")
    for i in st_reads(0): a(i)
    for s in range(16):
        if s + 1 < 16:
            for i in vw(s + 1): a(i)
        newchunk = (s + 1) % 4 == 0 and s + 1 < 16
        if newchunk:
            for i in vw(('x', (s + 1) // 4)): a(i)
        a("s_waitcnt lgkmcnt(0)")
        if newchunk or s == 15:
            a("s_barrier")
        if s in (4, 8, 12): stamp(a, opt, "s%d" % s)
        f1 = [(4, [x]) for x in st_reads(s + 1)] if s + 1 < 16 else []
        f2 = []
        if s + 3 < 16:
            for g in stage_dma(s + 3):
                f2.append((8, g)); a.vm_seq += 1
            ids[s + 3] = a.vm_seq
        if newchunk and (s + 1) // 4 + 1 < 4:
            c = (s + 1) // 4 + 1
            for g in x_dma(c):
                f2.append((8, g)); a.vm_seq += 1
            ids[('x', c)] = a.vm_seq
        f3 = []
        if s >= 14:
            k = s - 14
            La, Ld = newlab("fa"), newlab("fd")
            a("s_cmp_eq_u32 s%d, 0" % S_ROLE)
            a("s_cbranch_scc1 %s" % La)
            if opt.bpre:
                for g in ((4, 5) if k == 0 else (6,)):
                    for i in group_ins(g): a(i)
            else:
                for g in (2 * k, 2 * k + 1):
                    for i in group_ins(g): a(i)
            a("s_branch %s" % Ld)
            a.label(La)
            if k == 0:
                a("s_lshl_b32 s30, s%d, 7" % S_HH)
                a("s_lshl_b32 s31, s%d, 11" % S_HH)
                for i in range(2):
                    a("v_xor_b32 v%d, s30, v%d" % (V_KOFF + i, V_KOFF + i))
                    a("v_add_u32 v%d, s31, v%d" % (V_KOFF + i, V_KOFF + i))
                    a("v_add_u32 v%d, s31, v%d" % (V_VOFF + i, V_VOFF + i))
                a("s_add_u32 s%d, s%d, s31" % (S_WM0, S_RING))
            t = k
            for part in range(4):
                ins = a_half(part, S_WM0, t * 32768, 30)
                a(ins[0]); a("s_mov_b32 s30, %d" % (t * 8192 + (part & 1) * 4096)); a(ins[1]); a(ins[2])
            a.label(Ld)
        interleave(a, q_mf(s), f1 + f2)
    stamp(a, opt, "qend")
    a("s_nop 7")
    for q in range(5):
        for t in range(4):
            b = vACC(t, q)
            tb = 8 + (t & 1) * 2
            a("v_pk_mul_f32 %s, %s, v[6:7]" % (vr(b, 2), vr(b, 2)))
            a("v_pk_mul_f32 %s, %s, v[6:7]" % (vr(b + 2, 2), vr(b + 2, 2)))
            a("v_cvt_pk_bf16_f32 v%d, v%d, v%d" % (tb, b, b + 1))
            a("v_cvt_pk_bf16_f32 v%d, v%d, v%d" % (tb + 1, b + 2, b + 3))
            f = (t >> 1) * 5 + q
            if f < 8:
                a("ds_write_b64 v%d, %s offset:%d" % (V_QW, vr(tb, 2), f * 1024 + (t & 1) * 512))
            else:
                a("ds_write_b64 v%d, %s offset:%d" % (V_QW + 1, vr(tb, 2), 28672 + (f - 8) * 1024 + (t & 1) * 512))
    a("v_add_u32 v34, s%d, v%d" % (S_BLK, V_LIN))
    a("v_xor_b32 v35, 32768, v34")
    a("s_lshl_b32 s29, s%d, 13" % S_W)
    a("s_add_u32 s29, s29, %d" % LDS_SCR)
    a("v_add_u32 v38, s29, v%d" % V_LIN)
    a("v_xor_b32 v39, 8192, v38")
    def q_rd(jbase, vs, vb):
        for jp in range(2):
            for q in range(5):
                f = jp * 5 + q
                if f < 8:
                    a("ds_read_b128 %s, v%d offset:%d" % (ar(aQ(q, jbase + jp), 4), vs, f * 1024))
                else:
                    a("ds_read_b128 %s, v%d offset:%d" % (ar(aQ(q, jbase + jp), 4), vb, 28672 + (f - 8) * 1024))
    q_rd(0, 38, 34)
    for i in range(20):
        a("v_mov_b32 v%d, 0" % (V_L + i))
    for i in range(32):
        a("v_mov_b32 v%d, 0" % (vVF(1, 0) + i))
    for i in range(4):
        a("v_mov_b32 v%d, 0" % (V_P + 4 + i))
    a("s_waitcnt lgkmcnt(0)")
    a("s_cmp_eq_u32 s%d, 1" % S_ROLE)
    a("s_cbranch_scc1 L_nw")
    a("s_waitcnt vmcnt(8)")
    a.label("L_nw")
    if not opt.bpre:
        a("s_cmp_eq_u32 s%d, 0" % S_ROLE)
        a("s_cbranch_scc1 L_nw2")
        a("s_waitcnt vmcnt(0)")
        a.label("L_nw2")
    a("s_barrier")
    stamp(a, opt, "qx")
    q_rd(2, 39, 35)
    def k_reads(buf, kt, off):
        return ["ds_read_b128 %s, v%d offset:%d" % (vr(vKF(buf, kt, jl), 4), V_KRD + jl, off) for jl in range(4)]
    def v_reads(buf, hf, off):
        return ["ds_read_b64_tr_b16 %s, v%d offset:%d" % (vr(vVF(buf, el) + hf * 2, 2), V_VRD + el, off) for el in range(8)]
    for kt in range(2):
        for i in k_reads(0, kt, kt * 4096): a(i)
    for hf in range(2):
        for i in v_reads(0, hf, (2 + hf) * 4096): a(i)
    a("s_waitcnt lgkmcnt(0)")
    a("s_barrier")
    a("s_cmp_eq_u32 s%d, 0" % S_ROLE)
    a("s_cbranch_scc1 L_afill")
    for g in range(7 if opt.bpre else 4, 8):
        for i in group_ins(g): a(i)
    for g in range(4):
        for i in group_ins(g, tile_add=2): a(i)
    a("s_branch L_mref")
    a.label("L_afill")
    for t in range(2, 4):
        for part in range(4):
            ins = a_half(part, S_WM0, (t & 1) * 32768 + 16384, 30)
            a(ins[0]); a("s_mov_b32 s30, %d" % (t * 8192 + (part & 1) * 4096)); a(ins[1]); a(ins[2])
    a.label("L_mref")
    for jl in range(4):
        for q in range(5):
            d = vr(V_NEGM + q * 4, 4)
            a("%s %s, %s, %s, %s" % (MFMA, d, vr(vKF(0, 0, jl), 4), ar(aQ(q, jl), 4), "0" if jl == 0 else d))
    a("s_nop 7")
    for q in range(5):
        b = V_NEGM + q * 4
        a("v_max3_f32 v%d, v%d, v%d, v%d" % (b, b, b + 1, b + 2))
        a("v_max_f32 v%d, v%d, v%d" % (b, b, b + 3))
        a("v_mov_b32 v%d, v%d" % (b + 1, b))
    a("s_nop 1")
    for q in range(5):
        b = V_NEGM + q * 4
        a("v_permlane32_swap_b32 v%d, v%d" % (b, b + 1))
    a("s_nop 1")
    for q in range(5):
        b = V_NEGM + q * 4
        a("v_max_f32 v%d, v%d, v%d" % (b, b, b + 1))
        a("v_mov_b32 v%d, v%d" % (b + 1, b))
    a("s_nop 1")
    for q in range(5):
        b = V_NEGM + q * 4
        a("v_permlane16_swap_b32 v%d, v%d" % (b, b + 1))
    a("s_nop 1")
    for q in range(5):
        b = V_NEGM + q * 4
        a("v_max_f32 v%d, v%d, v%d" % (b, b, b + 1))
        a("v_sub_f32 v%d, 0, v%d" % (b, b))
        a("v_mov_b32 v%d, v%d" % (b + 1, b))
        a("v_mov_b32 v%d, v%d" % (b + 2, b))
        a("v_mov_b32 v%d, v%d" % (b + 3, b))
    a("s_nop 1")
    def s_mfmas(buf, q, sb):
        l = []
        for jl in range(4):
            for kt in range(2):
                d = vr(V_S + sb * 8 + kt * 4, 4)
                l.append("%s %s, %s, %s, %s" % (MFMA, d, vr(vKF(buf, kt, jl), 4), ar(aQ(q, jl), 4), vr(V_NEGM + q * 4, 4) if jl == 0 else d))
        return l
    def pv_mfmas(buf, q, pb):
        l = []
        p = vr(V_P + pb * 4, 4)
        for el in range(8):
            d = ar(aO(el, q), 4)
            l.append("%s %s, %s, %s, %s" % (MFMA, d, vr(vVF(buf, el), 4), p, d))
        d = vr(V_L + q * 4, 4)
        l.append("%s %s, %s, %s, %s" % (MFMA, d, vr(V_ONES, 4), p, d))
        return l
    for m in s_mfmas(0, 0, 0):
        a(m)
    a("s_mov_b32 s%d, 8" % S_CNT)
    stamp(a, opt, "loop")
    a("s_lshl_b32 s29, s%d, 13" % S_ROLE)
    a("s_sub_u32 s%d, %d, s29" % (S_ST0, 4 * 8192))
    a("s_add_u32 s%d, s%d, 4096" % (S_ST1, S_ST0))
    a("s_cmp_eq_u32 s%d, 0" % S_ROLE)
    a("s_nop 2")
    a("s_cbranch_scc1 L_loopA")

    def valu_list(sb):
        val = []
        sbase = V_S + sb * 8
        pbase = V_P + sb * 4
        for k in range(8):
            val.append((8, ["v_exp_f32 v%d, v%d" % (sbase + k, sbase + k)]))
            if k >= 2 and k % 2 == 0:
                kk = k - 2
                val.append((4, ["v_cvt_pk_bf16_f32 v%d, v%d, v%d" % (pbase + kk // 2, sbase + kk, sbase + kk + 1)]))
        val.append((4, ["s_nop 0", "v_cvt_pk_bf16_f32 v%d, v%d, v%d" % (pbase + 3, sbase + 6, sbase + 7)]))
        return val
    def step_mfmas(tp, q):
        i = tp * 5 + q
        sm = s_mfmas(tp, q + 1, (i + 1) & 1) if q < 4 else s_mfmas(tp ^ 1, 0, (i + 1) & 1)
        pm = pv_mfmas(tp, q - 1, (i - 1) & 1) if q > 0 else pv_mfmas(tp ^ 1, 4, (i - 1) & 1)
        return sm + pm
    a.label("L_loopB")
    for tp in range(2):
        for q in range(5):
            nb = tp ^ 1
            mem = []
            if q >= 1:
                part = q - 1
                kind = 'K' if part < 2 else 'V'
                ins = dma_group(kind, nb * 4 + part, S_ST0 if (part & 1) == 0 else S_ST1)
                mem.append((4, ["s_waitcnt lgkmcnt(0)", ins[0]]))
                for x in ins[1:]:
                    mem.append((opt.dmacost, [x]))
                if q == 4:
                    mem.append((4, ["s_add_u32 s%d, s%d, 8192" % (S_ST0, S_ST0), "s_add_u32 s%d, s%d, 8192" % (S_ST1, S_ST1)]))
            if q < 4:
                part = q
                off = (nb * 4 + part) * 4096
                rd = k_reads(nb, part, off) if part < 2 else v_reads(nb, part - 2, off)
                mem.append((2, ["s_waitcnt vmcnt(28)"]))
                for x in rd:
                    mem.append((4, [x]))
            a.c("B tile parity %d step %d" % (tp, q))
            interleave(a, step_mfmas(tp, q), merge([valu_list((tp * 5 + q) & 1), mem]))
    a("s_sub_u32 s%d, s%d, 1" % (S_CNT, S_CNT))
    a("s_cmp_lg_u32 s%d, 0" % S_CNT)
    a("s_cbranch_scc1 L_loopB")
    a("s_branch L_loop_done")
    a.label("L_loopA")
    for tp in range(2):
        for q in range(5):
            nb = tp ^ 1
            mem = []
            if q == 0:
                a("s_waitcnt vmcnt(16) lgkmcnt(0)")
                a("s_barrier")
                if tp == 1:
                    for r in list(range(V_KRD, V_KRD + 4)) + list(range(V_VRD, V_VRD + 8)):
                        a("v_xor_b32 v%d, 16384, v%d" % (r, r))
            if q < 4:
                part = q
                ins = a_half(part, S_WM0, tp * 32768, S_ST0 if (part & 1) == 0 else S_ST1)
                mem.append((4, [ins[0]]))
                rd_off = nb * 32768 + part * 4096
                rd = k_reads(nb, part, rd_off) if part < 2 else v_reads(nb, part - 2, rd_off)
                mem.append((4, [rd[0]]))
                for x in ins[1:]:
                    mem.append((opt.dmacost, [x]))
                for x in rd[1:]:
                    mem.append((4, [x]))
            else:
                l = ["s_add_u32 s%d, s%d, 8192" % (S_ST0, S_ST0), "s_add_u32 s%d, s%d, 8192" % (S_ST1, S_ST1), "s_waitcnt lgkmcnt(0)"]
                if tp == 1:
                    l.append("s_xor_b32 s%d, s%d, 16384" % (S_WM0, S_WM0))
                a(l[2])
                mem.append((4, [l[0], l[1]] + l[3:]))
            a.c("A tile parity %d step %d" % (tp, q))
            interleave(a, step_mfmas(tp, q), merge([valu_list((tp * 5 + q) & 1), mem]))
    a("s_sub_u32 s%d, s%d, 1" % (S_CNT, S_CNT))
    a("s_cmp_lg_u32 s%d, 0" % S_CNT)
    a("s_cbranch_scc1 L_loopA")
    a.label("L_loop_done")
    a("s_nop 1")
    for m in pv_mfmas(1, 4, 1):
        a(m)
    stamp(a, opt, "lend")
    if not opt.k1only:
        a("s_mov_b32 s%d, s58" % S_DBG)
        a("s_and_b32 s%d, s59, 0xffff" % (S_DBG + 1))
        a("s_mov_b32 s%d, 256" % (S_DBG + 2))
        a("s_mov_b32 s%d, 0x20000" % (S_DBG + 3))
        a("v_mov_b32 v1, 0")
        a("buffer_load_dwordx2 %s, v1, s[%d:%d], 0 offen sc0 sc1" % (vr(V_TAG, 2), S_DBG, S_DBG + 3))
    a("s_waitcnt vmcnt(0) lgkmcnt(0)")
    a("s_barrier")
    a("s_nop 7")
    a("v_add_u32 v38, s%d, v%d" % (S_BLK, V_LIN))
    for q in range(5):
        a("v_mov_b32 v%d, v%d" % (8 + q, V_NEGM + q * 4))
        a("v_mov_b32 v%d, v%d" % (13 + q, V_L + q * 4))
    a("ds_write_b128 v38, v[8:11] offset:%d" % (20 * 1024))
    a("ds_write_b128 v38, v[12:15] offset:%d" % (21 * 1024))
    a("ds_write_b128 v38, v[16:19] offset:%d" % (22 * 1024))
    for el in range(4, 8):
        for q in range(5):
            a("ds_write_b128 v38, %s offset:%d" % (ar(aO(el, q), 4), ((el - 4) * 5 + q) * 1024))
    a("s_waitcnt lgkmcnt(0)")
    a("s_barrier")
    a("v_xor_b32 v38, 32768, v38")
    a("ds_read_b128 v[20:23], v38 offset:%d" % (20 * 1024))
    a("ds_read_b128 v[24:27], v38 offset:%d" % (21 * 1024))
    a("ds_read_b128 v[28:31], v38 offset:%d" % (22 * 1024))
    RB = 64
    for el in range(4):
        for q in range(5):
            a("ds_read_b128 %s, v38 offset:%d" % (vr(RB + (el * 5 + q) * 4, 4), (el * 5 + q) * 1024))
    a("s_waitcnt lgkmcnt(15)")
    GO, GT = 144, 154
    for q in range(5):
        a("v_min_f32 v%d, v%d, v%d" % (164 + q, 8 + q, 20 + q))
    for q in range(5):
        a("v_sub_f32 v%d, v%d, v%d" % (GO + 2 * q, 164 + q, 8 + q))
        a("v_sub_f32 v%d, v%d, v%d" % (GT + 2 * q, 164 + q, 20 + q))
    for q in range(5):
        a("v_exp_f32 v%d, v%d" % (GO + 2 * q, GO + 2 * q))
        a("v_exp_f32 v%d, v%d" % (GT + 2 * q, GT + 2 * q))
    a("s_nop 0")
    for q in range(5):
        a("v_mul_f32 v%d, v%d, v%d" % (164 + q, GO + 2 * q, 13 + q))
        a("v_fma_f32 v%d, v%d, v%d, v%d" % (164 + q, GT + 2 * q, 25 + q, 164 + q))
    for q in range(5):
        a("v_rcp_f32 v%d, v%d" % (164 + q, 164 + q))
    a("s_nop 0")
    for q in range(5):
        a("v_mul_f32 v%d, v%d, v%d" % (GO + 2 * q, GO + 2 * q, 164 + q))
        a("v_mul_f32 v%d, v%d, v%d" % (GT + 2 * q, GT + 2 * q, 164 + q))
    for q in range(5):
        a("v_mov_b32 v%d, v%d" % (GO + 2 * q + 1, GO + 2 * q))
        a("v_mov_b32 v%d, v%d" % (GT + 2 * q + 1, GT + 2 * q))
    a("s_waitcnt lgkmcnt(0)")
    for jp in range(2):
        for q in range(5):
            ob = 172 + ((jp * 5 + q) & 1) * 4
            for half in range(2):
                el = jp * 2 + half
                rb = RB + (el * 5 + q) * 4
                tb = 180 + half * 4
                for r in range(4):
                    a("v_accvgpr_read_b32 v%d, a%d" % (tb + r, aO(el, q) + r))
                for r in (0, 2):
                    a("v_pk_mul_f32 %s, %s, %s" % (vr(tb + r, 2), vr(tb + r, 2), vr(GO + 2 * q, 2)))
                for r in (0, 2):
                    a("v_pk_fma_f32 %s, %s, %s, %s" % (vr(tb + r, 2), vr(rb + r, 2), vr(GT + 2 * q, 2), vr(tb + r, 2)))
                a("v_cvt_pk_bf16_f32 v%d, v%d, v%d" % (ob + half * 2, tb, tb + 1))
                a("v_cvt_pk_bf16_f32 v%d, v%d, v%d" % (ob + half * 2 + 1, tb + 2, tb + 3))
            off = (jp * 5 + q) * 1024
            a("s_mov_b32 s29, %d" % (off & ~4095))
            a("buffer_store_dwordx4 %s, v%d, s[%d:%d], s29 offen offset:%d%s" % (vr(ob, 4), V_LIN, S_O, S_O + 3, off & 4095, "" if opt.k1only else " sc0 sc1"))
    stamp(a, opt, "end")
    if not opt.k1only:
        gen_tail(a, opt)
    stamp_store(a, opt)
    a.label("L_exit")
    a("s_endpgm")

def main():
    ap = argparse.ArgumentParser()
    ap.add_argument("-o", default="k.s")
    ap.add_argument("--nt", action="store_true")
    ap.add_argument("--stamp", action="store_true")
    ap.add_argument("--perm", type=int, default=1)
    ap.add_argument("--k1only", action="store_true")
    ap.add_argument("--hx", type=int, default=1)
    ap.add_argument("--first", type=int, default=2)
    ap.add_argument("--bpre", type=int, default=1)
    ap.add_argument("--dmacost", type=int, default=8)
    opt = ap.parse_args()
    a = Asm()
    hdr = "; generated by work/gen5.py\n"
    hdr += "; @launch grid=(256,1,1) block=(256,1,1) lds=%d\n" % LDS_TOTAL
    hdr += '.amdgcn_target "amdgcn-amd-amdhsa--gfx950"\n.text\n'
    hdr += ".globl %s\n.p2align 8\n.type %s,@function\n" % (KNAME, KNAME)
    gen(a, opt)
    s = hdr + a.text() + kd(KNAME, 512, 256)
    if opt.stamp:
        s = "; stamps: " + " ".join(STAMP_NAMES) + "\n" + s
    open(opt.o, "w").write(s)

if __name__ == "__main__":
    main()
```
